```python
import torch

def _softmax(x, axis=-1):
    return torch.softmax(x, dim=axis)
def _gelu(x):
    return torch.nn.functional.gelu(x, approximate="tanh")
def _silu(x):
    return torch.nn.functional.silu(x)
def _sigmoid(x):
    return torch.sigmoid(x)
def _layernorm(x, axis=-1, eps=1e-5):
    m = x.mean(dim=axis, keepdim=True)
    v = x.var(dim=axis, keepdim=True, unbiased=False)
    return (x - m) / torch.sqrt(v + eps)
def _scatter_add(tgt, idx, src, axis=0):
    return tgt.clone().index_add_(axis, idx, src)
def _segment_sum(src, seg, n):
    out = torch.zeros((n,) + src.shape[1:], dtype=src.dtype)
    return out.index_add_(0, seg, src)
def _pad(x, pw):
    flat = tuple(v for pair in reversed(pw) for v in pair)
    return torch.nn.functional.pad(x, flat)

kernel_name = 'gated_mix__linear_kernel_hedgehog__sliding_block__prompt'

def setup_inputs():

    _w = (lambda a: (lambda t: t.to(torch.bfloat16) if t.is_floating_point() else t)(torch.as_tensor(a)))
    def _A_setup():
        B, S, D, H = 1, 2048, 448, 16
        Dh = D // H
        return {
            "x": _w((lambda *s: torch.randn(*s, dtype=torch.bfloat16) * 0.05)(B, S, D)),
            "wqkv": _w((lambda *s: torch.randn(*s, dtype=torch.bfloat16) * 3.2)(D, 3 * D)),
            "w_phi": _w((lambda *s: torch.randn(*s, dtype=torch.bfloat16) * 3.2)(H, Dh, Dh) * (Dh ** -0.5)),
            "wo": _w((lambda *s: torch.randn(*s, dtype=torch.bfloat16) * 0.1)(D, D)),
        }
    _A_in = _A_setup()

    def _B_setup():
        B, S, D = 1, 2048, 448
        return {
            "x": _w((lambda *s: torch.randn(*s, dtype=torch.bfloat16) * 0.05)(B, S, D)),
            "wqkv": _w((lambda *s: torch.randn(*s, dtype=torch.bfloat16) * 1.6)(D, 3 * D)),
            "wo": _w((lambda *s: torch.randn(*s, dtype=torch.bfloat16) * 0.05)(D, D)),
        }
    _B_in = _B_setup()

    return {
        "A_x": _A_in["x"],
        "A_wqkv": _A_in["wqkv"],
        "A_w_phi": _A_in["w_phi"],
        "A_wo": _A_in["wo"],
        "B_x": _B_in["x"],
        "B_wqkv": _B_in["wqkv"],
        "B_wo": _B_in["wo"],
        "gate_w": _w((lambda *s: torch.randn(*s, dtype=torch.bfloat16) * 0.05)(448) * 16.0),
    }

def reference(A_x, A_wqkv, A_w_phi, A_wo, B_x, B_wqkv, B_wo, gate_w):
    def _A_ref(x, wqkv, w_phi, wo):
        B, S, D = x.shape
        H = 16; Dh = D // H
        qkv = (lambda x, *d: x.permute(*d))((x @ wqkv).reshape(B, S, 3, H, Dh), 2, 0, 3, 1, 4)
        q, k, v = qkv[0], qkv[1], qkv[2]
        pq = torch.einsum("bhsd,hdf->bhsf", q, w_phi)
        pk = torch.einsum("bhsd,hdf->bhsf", k, w_phi)
        phi_q = torch.concatenate([_softmax(pq, axis=-1), _softmax(-pq, axis=-1)], axis=-1)
        phi_k = torch.concatenate([_softmax(pk, axis=-1), _softmax(-pk, axis=-1)], axis=-1)
        kv = torch.einsum("bhsf,bhsd->bhfd", phi_k, v)
        z  = torch.einsum("bhsf->bhf", phi_k)
        num = torch.einsum("bhqf,bhfd->bhqd", phi_q, kv)
        den = torch.einsum("bhqf,bhf->bhq", phi_q, z)[..., None] + 1e-6
        o = num / den
        return (lambda x, *d: x.permute(*d))(o, 0, 2, 1, 3).reshape(B, S, D) @ wo

    def _B_ref(x, wqkv, wo):
        B, S, D = x.shape
        H = 16; Dh = D // H; W = 256
        qkv = (lambda x, *d: x.permute(*d))((x @ wqkv).reshape(B, S, 3, H, Dh), 2, 0, 3, 1, 4)
        q, k, v = qkv[0], qkv[1], qkv[2]
        scores = torch.einsum("bhqd,bhkd->bhqk", q, k) * (Dh ** -0.5)
        idx = torch.arange(S)
        mask = (idx[:, None] - idx[None, :] >= 0) & (idx[:, None] - idx[None, :] < W)
        scores = torch.where(mask[None, None], scores, -1e9)
        p = _softmax(scores, axis=-1)
        o = torch.einsum("bhqk,bhkd->bhqd", p, v)
        return (lambda x, *d: x.permute(*d))(o, 0, 2, 1, 3).reshape(B, S, D) @ wo

    x = A_x
    g = _sigmoid((x * gate_w).sum(-1, keepdims=True))
    a = _A_ref(x, A_wqkv, A_w_phi, A_wo)
    b = _B_ref(x, B_wqkv, B_wo)
    return g * a + (1 - g) * b
```

```python
import re, copy

REG_RE = re.compile(r'^(-|\|)?(abs\()?([vas])(\d+|\[(\d+):(\d+)\])\)?\|?$')
TRANS = ('v_exp_f32', 'v_log_f32', 'v_rcp_f32', 'v_rsq_f32', 'v_sqrt_f32', 'v_sin_f32', 'v_cos_f32', 'v_rcp_iflag_f32')


def regs_of(tok):
    tok = tok.strip()
    if tok == 'vcc': return [('s', 106), ('s', 107)]
    if tok == 'exec': return [('s', 126), ('s', 127)]
    if tok == 'm0': return [('s', 124)]
    m = REG_RE.match(tok)
    if not m: return []
    k = m.group(3)
    if m.group(5) is not None:
        return [(k, i) for i in range(int(m.group(5)), int(m.group(6)) + 1)]
    return [(k, int(m.group(4)))]


class Ins:
    __slots__ = ('text', 'op', 'kind', 'rd', 'wr', 'tag', 'cond', 'cfrag', 'passes', 'wide', 'cost', 'ab')

    def __init__(self, text, tag=None, cond=False):
        self.text = text; self.tag = tag; self.cond = cond
        self.cfrag = []; self.passes = 0; self.wide = []; self.ab = []
        t = text.split(';')[0].strip()
        if t.endswith(':') or t.startswith('.') or t == '':
            self.op = ''; self.kind = 'label'; self.rd = []; self.wr = []; self.cost = 0; return
        parts = t.split(None, 1)
        op = parts[0]; self.op = op
        rest = parts[1] if len(parts) > 1 else ''
        ops = [o.strip() for o in rest.split(',')] if rest else []
        mods = ''
        if ops:
            last = ops[-1].split(None, 1)
            for i, o in enumerate(ops):
                sp = o.split(None, 1)
                if len(sp) > 1:
                    mods = ' '.join([sp[1]] + ops[i + 1:]); ops = ops[:i] + [sp[0]]; break
        R = [regs_of(o) for o in ops]
        flat = lambda l: [x for y in l for x in y]
        rd, wr = [], []
        self.cost = 1
        if op == 'WAIT':
            self.kind = 'wait'; self.cost = 0
        elif op.startswith('v_mfma'):
            self.kind = 'mfma'; wr = R[0]; rd = flat(R[1:]); self.cfrag = R[3]; self.ab = R[1] + R[2]
            self.passes = 8 if '32x32' in op else 4; self.cost = 2
        elif op.startswith('buffer_') or op.startswith('global_'):
            if 'store' in op or ('atomic' in op and 'sc0' not in mods.split()):
                self.kind = 'vst'; rd = flat(R)
                if 'x4' in op or 'x3' in op: self.wide = R[0] if op.startswith('buffer_') else R[1]
            elif 'lds' in mods.split() or '_lds_' in op:
                self.kind = 'dma'; rd = flat(R) + [('s', 124)]
            elif op in ('buffer_inv', 'buffer_wbl2'):
                self.kind = 'vst'
            else:
                self.kind = 'vld'; wr = R[0]; rd = flat(R[1:])
                if 'd16' in op: rd = rd + R[0]
        elif op.startswith('ds_'):
            if op.startswith('ds_write'):
                self.kind = 'dsw'; rd = flat(R)
            else:
                self.kind = 'dsr'; wr = R[0]; rd = flat(R[1:])
        elif op.startswith('s_load') or op in ('s_memtime', 's_memrealtime'):
            self.kind = 'smem'; wr = R[0]; rd = flat(R[1:])
        elif op in ('s_waitcnt', 's_barrier', 's_nop', 's_endpgm', 's_setprio', 's_sleep') or op.startswith('s_cbranch') or op == 's_branch':
            self.kind = 'ctl'
            if 'vcc' in op: rd = regs_of('vcc')
            if op == 's_nop': self.cost = int(ops[0], 0) + 1
        elif op.startswith('s_cmp') or op.startswith('s_bitcmp'):
            self.kind = 'salu'; rd = flat(R)
        elif op.startswith('s_'):
            self.kind = 'salu'; wr = R[0]; rd = flat(R[1:])
            if op in ('s_addk_i32', 's_mulk_i32', 's_cmov_b32', 's_cmov_b64'): rd = rd + R[0]
        elif op.startswith('v_'):
            self.kind = 'valu'
            base = op.replace('_e32', '').replace('_e64', '')
            if base.startswith('v_permlane') and 'swap' in base:
                wr = R[0] + R[1]; rd = R[0] + R[1]; self.cost = 2
            elif base in ('v_add_co_u32', 'v_addc_co_u32', 'v_sub_co_u32'):
                wr = R[0] + R[1]; rd = flat(R[2:])
            else:
                wr = R[0]; rd = flat(R[1:])
                if base.startswith('v_fmac') or base == 'v_writelane_b32': rd = rd + R[0]
            if base in TRANS: self.cost = 2
        else:
            raise ValueError('unknown op ' + text)
        self.rd = rd; self.wr = wr

    def is_trans(self): return self.op.replace('_e32', '').replace('_e64', '') in TRANS
    def __repr__(self): return self.text


def I(text, **kw):
    return [Ins(l.strip(), **kw) for l in text.strip().split('\n') if l.strip() and not l.strip().startswith(';')]


def WAIT(*tags):
    w = Ins('WAIT'); w.tag = set(tags); return [w]


class State:
    def __init__(self):
        self.vm = []
        self.lg = []
        self.hist = []

    def fork(self):
        s = State(); s.vm = list(self.vm); s.lg = list(self.lg); s.hist = list(self.hist); return s


def _need(q, pred):
    for i in range(len(q) - 1, -1, -1):
        if pred(q[i]): return i
    return -1


def _states_needed(ins, hist):
    need = 0; dist = 0
    rd = set(ins.rd); wr = set(ins.wr)
    vrd = {r for r in rd if r[0] != 's'}; srd = {r for r in rd if r[0] == 's'}
    isvm = ins.kind in ('vld', 'vst', 'dma'); isds = ins.kind in ('dsr', 'dsw')
    base = ins.op.replace('_e32', '').replace('_e64', '')
    for p in reversed(hist):
        if dist >= 20: break
        req = 0
        pw = set(p.wr)
        if p.kind == 'valu':
            pv = {r for r in pw if r[0] != 's'}; ps = {r for r in pw if r[0] == 's'}
            if ins.kind == 'mfma' and pv & vrd: req = max(req, 2)
            if ins.kind == 'valu' and (base.startswith('v_permlane') or 'dpp' in ins.text or 'row_' in ins.text) and pv & vrd: req = max(req, 2)
            if base in ('v_readfirstlane_b32', 'v_readlane_b32') and pv & vrd: req = max(req, 1)
            if p.is_trans() and pv & vrd and (ins.kind != 'valu' or not ins.is_trans() or True): req = max(req, 1)
            if ps & srd:
                if ins.kind == 'valu': req = max(req, 4 if 'lane' in base else 2)
                if isvm: req = max(req, 5)
                if ins.kind in ('salu', 'ctl', 'smem'): req = max(req, 1)
        elif p.kind == 'mfma':
            big = 12 if p.passes == 8 else 8
            if ins.kind == 'mfma':
                if pw & set(ins.ab): req = max(req, big)
                c = set(ins.cfrag)
                if pw & c and not (list(p.wr) == list(ins.cfrag) and p.passes == ins.passes): req = max(req, big - 2)
                if pw & wr and p.passes != ins.passes: req = max(req, big)
            elif ins.kind == 'valu' or isvm or isds:
                if pw & (vrd | wr): req = max(req, big)
                if ins.kind == 'valu' and set(p.cfrag) & wr: req = max(req, 7 if p.passes == 8 else 3)
        elif p.kind == 'vst':
            if p.wide and set(p.wide) & wr: req = max(req, 2)
        elif p.kind == 'salu':
            if ('s', 124) in pw and ins.kind == 'dma': req = max(req, 1)
        if req - dist > need: need = req - dist
        if p.kind != 'label' and not p.cond: dist += (p.cost if p.op == 's_nop' else 1)
    return need


def finalize(path, st, stats=None):
    out = []

    def put(i):
        n = _states_needed(i, st.hist)
        while n > 0:
            k = min(n, 16)
            nop = Ins('s_nop %d' % (k - 1)); out.append(nop); st.hist.append(nop); n -= k
            if stats is not None: stats['nop'] = stats.get('nop', 0) + k
        out.append(i); st.hist.append(i)
        if len(st.hist) > 64: del st.hist[:32]

    for ins in path:
        touched = set(ins.rd) | set(ins.wr)
        if ins.kind == 'wait':
            vi = _need(st.vm, lambda o: o.tag in ins.tag); li = _need(st.lg, lambda o: o.tag in ins.tag)
        elif ins.kind == 'label':
            vi = li = -1
        else:
            vi = _need(st.vm, lambda o: o.kind == 'vld' and touched & set(o.wr) and not (ins.kind == 'vld' and 'd16' in ins.op))
            li = _need(st.lg, lambda o: touched & set(o.wr))
        w = []
        if vi >= 0:
            n = sum(1 for o in st.vm[vi + 1:] if not o.cond)
            n = min(n, 62); w.append('vmcnt(%d)' % n); st.vm = st.vm[vi + 1:]
        if li >= 0:
            if any(o.kind == 'smem' for o in st.lg):
                w.append('lgkmcnt(0)'); st.lg = []
            else:
                n = sum(1 for o in st.lg[li + 1:] if not o.cond)
                w.append('lgkmcnt(%d)' % min(n, 14)); st.lg = st.lg[li + 1:]
        if w:
            put(Ins('s_waitcnt ' + ' '.join(w)))
            if stats is not None: stats['wait'] = stats.get('wait', 0) + 1
        if ins.kind == 'wait': continue
        if ins.op == 's_waitcnt':
            m = re.search(r'vmcnt\((\d+)\)', ins.text)
            if m and int(m.group(1)) == 0 and not ins.cond: st.vm = []
            m = re.search(r'lgkmcnt\((\d+)\)', ins.text)
            if m and int(m.group(1)) == 0 and not ins.cond: st.lg = []
        put(ins)
        if ins.kind in ('vld', 'vst', 'dma'): st.vm.append(ins)
        if ins.kind in ('dsr', 'dsw', 'smem'): st.lg.append(ins)
    return out


def cost(l): return sum(i.cost for i in l)


def units(l):
    return [u if isinstance(u, list) else [u] for u in l]


def merge(*streams, span=None):
    span = span or [1] * len(streams)
    span = [sp for s, sp in zip(streams, span) if s]
    ss = [units(s) for s in streams if s]
    tot = [max(1, sum(cost(u) for u in s)) / sp for s, sp in zip(ss, span)]
    pos = [0] * len(ss); done = [0] * len(ss); out = []
    while True:
        best = None
        for k, s in enumerate(ss):
            if pos[k] < len(s):
                f = done[k] / tot[k]
                if best is None or f < best[0] - 1e-12: best = (f, k)
        if best is None: break
        k = best[1]; u = ss[k][pos[k]]; out += u; done[k] += cost(u); pos[k] += 1
    return out


class Feeder:
    def __init__(self, stream): self.u = units(stream); self.p = 0
    def take(self, budget):
        out = []
        while self.p < len(self.u) and budget > 0:
            u = self.u[self.p]; out.append(u); budget -= max(cost(u), 0.01); self.p += 1
        return out
    def rest(self):
        out = self.u[self.p:]; self.p = len(self.u); return out
    def left(self): return sum(cost(u) for u in self.u[self.p:])


def flat(l):
    out = []
    for u in l:
        if isinstance(u, list): out += flat(u)
        else: out.append(u)
    return out


def text(l):
    return '\n'.join((i.text if i.kind == 'label' else '    ' + i.text) for i in l) + '\n'
```

```python
import sys, math, struct
sys.path.insert(0, 'work')
from asmlib import *

NAME = 'gated_mix__linear_kernel_hedgehog__sliding_block__prompt'
def f2u(x): return struct.unpack('<I', struct.pack('<f', x))[0]
def H(x): return '0x%x' % (x & 0xffffffff)

class Cfg:
    stamps = False
    round_pq = True
    round_pk = False
    force_slow = False
    rot = True
cfg = Cfg()

WQ, G3, G0, G1, G2, XR = 0, 57344, 81920, 106496, 131072, 155648
GRP = [G0, G1, G2, G3]
WV = G3
KT = G1 + 8192
VT = G3
WOA, WOB = WQ, G1
LDS_BYTES = 163840
BASES = [0, 57344, 114688]
WS_E, WS_XCC, WS_FK, WS_FV, WS_FP, WS_FO = 0, 0x1000, 0x2000, 0x3000, 0x4000, 0x6000
WS_K, WS_V, WS_KP, WS_O = 0x100000, 0x300000, 0x500000, 0x600000
WS_STAMP = 0xA00000
WS_BYTES = 0xB00000
OOB = 0x7f000000
SPIN = 200000
sX, sW, sWS, sWOA, sWOB, sOUT, sPHI, sGATE = ('s[%d:%d]' % (b, b + 3) for b in (28, 32, 36, 40, 44, 48, 52, 56))
sNONCE, sXW = 's26', 's27'
sXCD, sJ, sP, sBR, sR, sRB, sWV, sTH, sHD, sH, sROT, sM4, sM2 = ('s%d' % i for i in range(60, 73))
sXO = ['s%d' % i for i in range(73, 80)]
sWO = ['s%d' % i for i in range(80, 87)]
sT0, sT1, sT2 = 's87', 's88', 's89'
sHALF = 's[90:91]'
sMODE, sSPIN = 's92', 's93'
sTM = 's[94:95]'
sINV = 's96'
sWOO = 's97'
sT3 = 's98'
def v(i, n=1): return 'v%d' % i if n == 1 else 'v[%d:%d]' % (i, i + n - 1)
def a(i, n=1): return 'a%d' % i if n == 1 else 'a[%d:%d]' % (i, i + n - 1)
vL16 = 1
vWOA = 2
vG = 4
vOST = 6
vFO = 7
vNON = 8
vPOLL = 9
vPA = 10
vC = 12
vM = 14
vM1 = 16
vT = 20
QF, PB, OA, MD, MF, SB = 32, 48, 64, 80, 96, 112
WF, ACC0, ACC1, KF, VF = 112, 144, 176, 208, 224
vXA = 48
vWA = 52
vXR = 54
vWR = 62
vKST = 65
vFST = 66
vTRW = 67
vTRR = 11
vDMA = 68

LOG2E = 1.4426950408889634
CB = LOG2E / math.sqrt(28.0)
BIG = 1e30

stamp_n = [0]
def stamp(i):
    if not cfg.stamps: return []
    return I(f"""s_memtime s[100:101]
    s_waitcnt lgkmcnt(0)
    v_writelane_b32 v31, s100, {i}""")

def lds_sel(regs, bases, off):
    for r, b in reversed(list(zip(regs, bases))):
        if off >= b:
            assert off - b < 65536
            return r, off - b
    raise ValueError

def mfma(d, A, B, c): return Ins(f"v_mfma_f32_32x32x16_bf16 {d}, {A}, {B}, {c}")

def prologue(code_len):
    o = I(f"""
    s_cmp_ge_u32 s2, 256
    s_cbranch_scc1 L_end
    s_load_dwordx8 s[4:11], s[0:1], 0
    s_load_dwordx8 s[12:19], s[0:1], 32
    s_load_dwordx4 s[20:23], s[0:1], 64
    s_load_dwordx2 s[24:25], s[0:1], 80
    """)
    if cfg.stamps: o += I("s_memtime s[100:101]\ns_memrealtime s[98:99]")
    o += I(f"""
    s_getpc_b64 {sTM}
    v_lshrrev_b32 v20, 6, v0
    s_and_b32 {sXCD}, s2, 7
    v_readfirstlane_b32 {sWV}, v20
    s_lshr_b32 {sJ}, s2, 3
    v_and_b32 v21, 63, v0
    s_and_b32 s94, s94, 0xffffff00
    s_lshl_b32 {sT0}, {sJ}, 2
    s_add_u32 {sT0}, {sT0}, {sWV}
    s_lshl_b32 {sT0}, {sT0}, 8
    v_and_b32 v22, 1, v0
    v_lshlrev_b32 v22, 7, v22
    v_add_u32 v22, {sT0}, v22
    v_min_u32 v22, {H(code_len - 4)}, v22
    global_load_dword v30, v22, {sTM}
    s_and_b32 {sP}, {sJ}, 7
    s_bfe_u32 {sBR}, {sJ}, 0x10003
    s_lshr_b32 {sR}, {sJ}, 4
    s_lshl_b32 {sRB}, {sXCD}, 1
    s_add_u32 {sRB}, {sRB}, {sR}
    s_lshr_b32 {sTH}, {sWV}, 1
    s_and_b32 {sHD}, {sWV}, 1
    s_lshl_b32 {sH}, {sP}, 1
    s_add_u32 {sH}, {sH}, {sHD}
    s_lshl_b32 {sM4}, {sWV}, 12
    s_lshl_b32 {sM2}, {sWV}, 11
    """)
    if cfg.rot:
        o += I(f"""
        s_and_b32 {sROT}, {sP}, 1
        s_lshl_b32 {sROT}, {sROT}, 1
        s_xor_b32 {sT0}, {sR}, {sBR}
        s_add_u32 {sROT}, {sROT}, {sT0}
        s_mul_i32 {sROT}, {sROT}, 7
        s_lshr_b32 {sROT}, {sROT}, 2
        """)
    else:
        o += I(f"s_mov_b32 {sROT}, 0")
    o += I(f"""
    v_lshrrev_b32 v22, 3, v21
    v_and_b32 v23, 7, v21
    v_lshrrev_b32 v24, 4, v21
    v_xor_b32 v25, v23, v24
    v_mul_u32_u24 v26, 896, v22
    s_lshl_b32 {sT0}, {sRB}, 7
    s_lshl_b32 {sT1}, {sWV}, 5
    s_add_u32 {sT0}, {sT0}, {sT1}
    s_mul_i32 {sT0}, {sT0}, 896
    v_add_u32 v26, {sT0}, v26
    v_lshl_add_u32 {v(vXA)}, v25, 4, v26
    v_xor_b32 v25, 4, v25
    v_lshl_add_u32 {v(vXA+1)}, v25, 4, v26
    v_add_u32 {v(vXA+2)}, {2*(7168-1024)}, {v(vXA)}
    v_add_u32 {v(vXA+1)}, {7168-1024}, {v(vXA+1)}
    v_add_u32 {v(vXA+3)}, {2*(7168-1024)}, {v(vXA+1)}
    v_and_b32 v25, 1, v24
    v_lshlrev_b32 v25, 2, v25
    v_xor_b32 v25, v25, v23
    v_mul_u32_u24 v26, 2688, v22
    s_mul_i32 {sT0}, {sWV}, {16*2688}
    s_mul_i32 {sT1}, {sP}, 112
    s_add_u32 {sT0}, {sT0}, {sT1}
    v_add_u32 v26, {sT0}, v26
    v_lshl_add_u32 v26, v25, 4, v26
    v_cmp_eq_u32 vcc, 7, v25
    v_mov_b32 v27, {H(OOB)}
    v_add_u32 v28, {8*2688-1024}, v26
    v_cndmask_b32 {v(vWA)}, v26, v27, vcc
    v_cndmask_b32 {v(vWA+1)}, v28, v27, vcc
    v_lshlrev_b32 {v(vL16)}, 4, v21
    """)
    def chunk(i):
        return I(f"""
        s_add_u32 {sT0}, {sROT}, {i}
        s_cmp_ge_u32 {sT0}, 7
        s_cselect_b32 {sT1}, 7, 0
        s_sub_u32 {sT0}, {sT0}, {sT1}
        s_lshl_b32 {sXO[i]}, {sT0}, 7
        s_mul_i32 {sWO[i]}, {sT0}, {64*2688}
        """)
    o += chunk(0) + chunk(1)
    o += I(f"""
    s_mov_b32 s30, 1835008
    s_mov_b32 s31, 0x20000
    s_mov_b32 s34, 1204224
    s_mov_b32 s35, 0x20000
    s_cmp_eq_u32 {sBR}, 1
    s_waitcnt lgkmcnt(0)
    s_load_dword {sNONCE}, s[24:25], {WS_E}
    s_mov_b32 s28, s4
    s_mov_b32 s29, s5
    s_cselect_b32 s32, s14, s6
    s_cselect_b32 s33, s15, s7
    """)
    if cfg.stamps: o += I("v_writelane_b32 v31, s100, 0\nv_writelane_b32 v31, s98, 30")
    o += flat(loads(0))
    o += I(f"""
    s_mov_b32 s36, s24
    s_mov_b32 s37, s25
    s_mov_b32 s38, {H(WS_BYTES)}
    s_mov_b32 s39, 0x20000
    s_cmp_lt_u32 {sJ}, 28
    s_cselect_b32 s42, 401408, 0
    s_cselect_b32 s46, 401408, 0
    s_mov_b32 s40, s10
    s_mov_b32 s41, s11
    s_mov_b32 s43, 0x20000
    s_mov_b32 s44, s16
    s_mov_b32 s45, s17
    s_mov_b32 s47, 0x20000
    s_mov_b32 s48, s20
    s_mov_b32 s49, s21
    s_mov_b32 s50, 1835008
    s_mov_b32 s51, 0x20000
    s_cmp_eq_u32 {sBR}, 0
    s_cselect_b32 s54, 25088, 0
    s_mov_b32 s52, s8
    s_mov_b32 s53, s9
    s_mov_b32 s55, 0x20000
    s_mov_b32 s56, s18
    s_mov_b32 s57, s19
    s_mov_b32 s58, 896
    s_mov_b32 s59, 0x20000
    s_mov_b32 s90, 0
    s_mov_b32 s91, -1
    """)
    o += I(f"""
    v_add_u32 v26, 256, v0
    v_cmp_gt_u32 vcc, 192, v0
    s_lshl_b32 {sT0}, {sROT}, 6
    s_mul_i32 {sT1}, {sP}, 3136
    v_cndmask_b32 v26, v0, v26, vcc
    v_add_u32 v27, {sT0}, v0
    v_add_u32 v28, {sT0}, v26
    v_subrev_u32 v29, 448, v27
    v_min_u32 v27, v27, v29
    v_subrev_u32 v29, 448, v28
    v_min_u32 v28, v28, v29
    v_lshlrev_b32 v27, 1, v27
    v_lshlrev_b32 v28, 1, v28
    buffer_load_ushort v72, v27, {sGATE}, 0 offen
    buffer_load_ushort v76, v28, {sGATE}, 0 offen
    s_lshl_b32 {sT2}, {sWV}, 10
    s_add_u32 {sT1}, {sT1}, {sT2}
    s_add_u32 m0, {sT2}, {XR}
    v_bfe_u32 v27, v0, 1, 1
    """)
    o += I(f"buffer_load_dwordx4 {v(vL16)}, {sPHI}, {sT1} offen lds", tag='phi')
    o += flat(loads(1))
    for i in range(2, 7): o += chunk(i)
    o += I(f"""
    v_lshlrev_b32 v27, 6, v27
    v_xor_b32 v27, 112, v27
    v_lshl_add_u32 v70, v0, 7, v27
    v_lshl_add_u32 v71, v26, 7, v27
    v_mov_b32 v73, 0
    v_mov_b32 v75, 0
    v_mov_b32 v77, 0
    v_mov_b32 v79, 0
    """)
    o += I(f"""
    v_and_b32 v22, 31, v21
    v_lshrrev_b32 v23, 5, v21
    v_bfe_u32 v24, v21, 1, 3
    v_xor_b32 v24, v24, v23
    v_lshlrev_b32 v24, 4, v24
    v_lshl_add_u32 v24, v22, 7, v24
    s_lshl_b32 {sT0}, {sTH}, 13
    s_add_u32 {sT0}, {sT0}, {BASES[1]}
    v_add_u32 {v(vXR)}, {sT0}, v24
    v_xor_b32 {v(vXR+1)}, 32, {v(vXR)}
    v_xor_b32 {v(vXR+2)}, 64, {v(vXR)}
    v_xor_b32 {v(vXR+3)}, 96, {v(vXR)}
    """)
    for s in range(4): o += I(f"v_add_u32 {v(vXR+4+s)}, {BASES[2]-BASES[1]}, {v(vXR+s)}")
    o += I(f"""
    v_bfe_u32 v25, v21, 2, 2
    v_bfe_u32 v26, v21, 4, 1
    v_and_b32 v27, 3, v21
    v_lshl_add_u32 v26, v26, 2, v27
    s_mul_i32 {sT0}, {sHD}, 56
    s_lshl_b32 {sT1}, {sHD}, 3
    s_sub_u32 {sT1}, 120, {sT1}
    v_lshlrev_b32 v27, 3, v26
    v_add_u32 v27, {sT0}, v27
    v_mov_b32 v28, {sT1}
    v_cmp_eq_u32 vcc, 7, v26
    v_lshrrev_b32 v29, 1, v25
    v_lshlrev_b32 v29, 6, v29
    v_cndmask_b32 v27, v27, v28, vcc
    v_xor_b32 v27, v27, v29
    v_lshl_add_u32 v28, v23, 3, v25
    v_lshl_add_u32 {v(vWR)}, v28, 7, v27
    v_add_u32 {v(vWR+1)}, {BASES[1]}, {v(vWR)}
    v_add_u32 {v(vWR+2)}, {BASES[2]}, {v(vWR)}
    """)
    o += I(f"""
    v_cmp_eq_u32 vcc, 28, v22
    v_mov_b32 v27, 0
    v_mov_b32 v28, 1.0
    v_cndmask_b32 {v(ACC1)}, v27, v28, vcc""")
    for i in range(1, 32): o += I(f"v_mov_b32 {v(ACC1+i)}, {v(ACC1)}")
    o += I(f"""
    s_mul_i32 {sT0}, {sJ}, 37
    s_lshr_b32 {sT0}, {sT0}, 8
    s_mul_i32 {sT1}, {sT0}, 7
    s_sub_u32 {sT1}, {sJ}, {sT1}
    s_lshl_b32 {sT1}, {sT1}, 7
    s_mul_i32 {sT2}, {sWV}, {16*896}
    s_add_u32 {sT1}, {sT1}, {sT2}
    v_lshrrev_b32 v27, 3, v21
    v_mul_u32_u24 v27, 896, v27
    v_bfe_u32 v28, v21, 4, 1
    v_lshlrev_b32 v28, 2, v28
    v_and_b32 v29, 7, v21
    v_xor_b32 v28, v28, v29
    v_lshl_add_u32 v27, v28, 4, v27
    v_add_u32 {v(vWOA)}, {sT1}, v27
    v_add_u32 {v(vWOA+1)}, {8*896-1024}, {v(vWOA)}
    s_lshl_b32 {sT0}, {sRB}, 1
    s_add_u32 {sT0}, {sT0}, {sTH}
    s_lshl_b32 {sT1}, {sBR}, 5
    s_add_u32 {sT1}, {sT1}, {sT0}
    s_lshl_b32 {sT2}, {sT1}, 16
    s_lshl_b32 {sT3}, {sH}, 11
    s_add_u32 {sT2}, {sT2}, {sT3}
    s_add_u32 {sT2}, {sT2}, {H(WS_O)}
    v_add_u32 {v(vOST)}, {sT2}, {v(vL16)}
    s_lshl_b32 {sT1}, {sT1}, 7
    s_lshl_b32 {sT3}, {sH}, 2
    s_add_u32 {sT1}, {sT1}, {sT3}
    s_add_u32 {sT1}, {sT1}, {H(WS_FO)}
    v_mov_b32 {v(vFO)}, {sT1}
    s_cmp_eq_u32 {sBR}, 1
    s_cbranch_scc1 L_pathB
    """)
    return o

def loads(g):
    ps, i = divmod(g, 7)
    out = []
    if ps == 0:
        base = GRP[i % 4]
        grp = I(f"s_add_u32 m0, {sM4}, {base}")
        for q in range(4):
            x = I(f"buffer_load_dwordx4 {v(vXA+q)}, {sX}, {sXO[i]} offen offset:{q*1024} lds", tag=f'L{g}')
            out.append(grp + x if q == 0 else x)
        wb, sec = base + 16384, 1
    elif ps == 1: wb, sec = WV + i * 8192, 2
    else: wb, sec = WQ + i * 8192, 0
    d = [I(f"buffer_load_dwordx4 {v(vWA+q)}, {sW}, {sWO[i]} offen offset:{q*1024+sec*896} lds", tag=f'L{g}') for q in range(2)]
    m = I(f"s_add_u32 m0, {sM2}, {wb - sec*896}")
    if ps == 2:
        out.append(m + I("s_mov_b32 exec_lo, 0xf7f77f7f\ns_mov_b32 exec_hi, 0xf7f77f7f") + d[0] + d[1] + I("s_mov_b64 exec, -1"))
    else:
        out.append(m + d[0]); out.append(d[1])
    return out

def reads(g):
    ps, i = divmod(g, 7)
    wb = (GRP[i % 4] + 16384) if ps == 0 else (WV + i * 8192 if ps == 1 else WQ + i * 8192)
    buf = WF + 16 * (g & 1)
    out = []
    for s in range(4):
        for jj in range(2):
            r, off = lds_sel([vWR, vWR + 1, vWR + 2], BASES, wb + s * 2048 + jj * 512)
            out += I(f"ds_read_b64_tr_b16 {v(buf+4*s+2*jj, 2)}, {v(r)} offset:{off}", tag=f'B{g+1}')
        if ps == 0:
            for t in range(2):
                r, off = lds_sel([vXR + s, vXR + 4 + s], BASES[1:], GRP[i % 4] + t * 4096)
                out += I(f"ds_read_b128 {a(32*i+8*s+4*t, 4)}, {v(r)} offset:{off}", tag=f'B{g+1}')
    return out

def mms(g):
    ps, i = divmod(g, 7)
    buf = WF + 16 * (g & 1)
    acc = ACC1 if ps == 1 else ACC0
    out = []
    for s in range(4):
        for t in range(2):
            d = v(acc + 16 * t, 16); w = v(buf + 4 * s, 4); x = a(32 * i + 8 * s + 4 * t, 4)
            c = '0' if (i == 0 and s == 0 and ps != 1) else d
            out.append(mfma(d, x, w, c) if ps == 1 else mfma(d, w, x, c))
    return out

def issue_plan(g):
    if g <= 4: return [g + 2]
    if g == 5: return [7, 8]
    if g == 6: return [9, 10]
    if g + 4 <= 20: return [g + 4]
    return []

def flag_store(vaddr, off, sc1=True, cond=False):
    return I(f"s_mov_b64 exec, 1\nbuffer_store_dword {v(vNON)}, {v(vaddr)}, {sWS}, 0 offen offset:{off}{' sc1' if sc1 else ''}\ns_mov_b64 exec, -1", cond=cond)

spin_blocks = []
def poll_issue(off=0):
    return I(f"buffer_load_dword {v(vPOLL)}, {v(vPA)}, {sWS}, 0 offen offset:{off} sc1", tag='poll')
def poll_check(name, off=0):
    spin_blocks.append(f"""L_spin_{name}:
    s_mov_b32 {sSPIN}, 0
L_spin_{name}_l:
    buffer_load_dword {v(vPOLL)}, {v(vPA)}, {sWS}, 0 offen offset:{off} sc1
    s_add_u32 {sSPIN}, {sSPIN}, 1
    s_waitcnt vmcnt(0)
    v_cmp_ne_u32 vcc, {v(vPOLL)}, {v(vNON)}
    s_cmp_gt_u32 {sSPIN}, {SPIN}
    s_cbranch_scc1 L_go_{name}
    s_cbranch_vccnz L_spin_{name}_l
    s_branch L_go_{name}
""")
    return I(f"""v_cmp_ne_u32 vcc, {v(vPOLL)}, {v(vNON)}
    s_cbranch_vccnz L_spin_{name}
    L_go_{name}:""")

def phase1(pre, fill):
    o = []
    for g in range(22):
        o += WAIT(f'L{g}', f'B{g}')
        if g <= 20: o += I("s_barrier")
        o += flat(pre.get(g, []))
        ld = [u for k in issue_plan(g) for u in loads(k)]
        rd = reads(g) if g <= 20 else []
        mm = mms(g - 1) if g >= 1 else []
        o += merge(mm, rd, ld, fill.get(g, []), span=[1, 0.6, 1, 1])
        if g in (0, 7, 14, 21): o += stamp(1 + g // 7)
    return o

def common_tick0():
    o = I(f"""
    s_mul_i32 {sNONCE}, {sNONCE}, 1664525
    s_add_u32 {sNONCE}, {sNONCE}, 1013904223
    s_getreg_b32 {sT0}, hwreg(HW_REG_XCC_ID)
    s_and_b32 {sT0}, {sT0}, 15
    s_lshl_b32 {sXW}, {sNONCE}, 4
    s_or_b32 {sXW}, {sXW}, {sT0}
    v_mov_b32 {v(vNON)}, {sNONCE}
    """)
    return o

def xcc_publish():
    return I(f"""
    s_lshl_b32 {sT0}, {sXCD}, 7
    s_lshl_b32 {sT1}, {sJ}, 2
    s_add_u32 {sT0}, {sT0}, {sT1}
    s_add_u32 {sT0}, {sT0}, {WS_XCC}
    s_cmp_eq_u32 {sWV}, 0
    s_cselect_b32 {sT0}, {sT0}, {H(OOB)}
    v_mov_b32 v20, {sT0}
    v_mov_b32 v21, {sXW}
    s_mov_b64 exec, 1
    buffer_store_dword v21, v20, {sWS}, 0 offen sc1
    s_mov_b64 exec, -1
    """)

def gate_write():
    return I(f"""v_mov_b32 v74, v72
    v_mov_b32 v78, v76""") + I("ds_write_b128 v70, v[72:75]\nds_write_b128 v71, v[76:79]", tag='B3')

def xcc_issue():
    return I(f"""
    v_and_b32 v20, 31, v0
    s_lshl_b32 {sT0}, {sXCD}, 7
    s_add_u32 {sT0}, {sT0}, {WS_XCC}
    v_lshl_add_u32 v20, v20, 2, {sT0}
    buffer_load_dword v30, v20, {sWS}, 0 offen sc1""")
def xcc_check():
    o = I(f"""
    v_cmp_ne_u32 vcc, {sXW}, v30
    s_cmp_eq_u64 vcc, 0
    s_cselect_b32 {sMODE}, 1, 0""")
    if cfg.force_slow: o += I(f"s_mov_b32 {sMODE}, 0")
    return o

def pretouch(nflag):
    return I(f"""
    v_and_b32 v20, 15, v0
    v_bfe_u32 v21, v0, 4, 1
    v_lshlrev_b32 v20, 7, v20
    v_lshl_add_u32 v20, v21, 15, v20
    v_sub_u32 v22, {v(vOST)}, {v(vL16)}
    v_add_u32 v20, v20, v22
    v_lshl_add_u32 v21, v21, 12, {v(vFO)}
    v_cndmask_b32 v20, v20, {'v21' if nflag == 2 else v(vFO)}, {sHALF}
    buffer_load_dword v30, v20, {sWS}, 0 offen""")

def cvt(dst, src, n=8):
    return [Ins(f"v_cvt_pk_bf16_f32 {v(dst+i)}, {v(src+2*i)}, {v(src+2*i+1)}") for i in range(n)]

def round_bf16(r):
    return I(f"v_cvt_pk_bf16_f32 {v(r)}, {v(r)}, {v(r)}\nv_and_b32 {v(r)}, 0xffff0000, {v(r)}")

def gate(t, isB, tmp):
    src = ACC0 + 16 * t + 12
    g = vG + t
    o = I(f"""v_mov_b32 {v(tmp)}, {v(src)}
    v_mov_b32 {v(g)}, {v(src)}
    v_permlane32_swap_b32 {v(tmp)}, {v(g)}""")
    o += round_bf16(g)
    o += I(f"""v_mul_f32 {v(g)}, {H(f2u(-LOG2E))}, {v(g)}
    v_exp_f32 {v(g)}, {v(g)}
    v_add_f32 {v(g)}, 1.0, {v(g)}
    v_rcp_f32 {v(g)}, {v(g)}""")
    o += round_bf16(g)
    if isB:
        o += I(f"v_sub_f32 {v(g)}, 1.0, {v(g)}") + round_bf16(g)
    return o

mode_n = [0]
def o_store(src, t, tag):
    n = mode_n[0]; mode_n[0] += 1
    so = 's99'
    o = I(f"s_mov_b32 {so}, {t*32768}\ns_cmp_eq_u32 {sMODE}, 1\ns_cbranch_scc1 L_fast{n}")
    o += I(f"""buffer_store_dwordx4 {v(src,4)}, {v(vOST)}, {sWS}, {so} offen sc1
    buffer_store_dwordx4 {v(src+4,4)}, {v(vOST)}, {sWS}, {so} offen offset:1024 sc1""", tag=tag, cond=True)
    o += I(f"s_branch L_fj{n}\nL_fast{n}:", cond=True)
    o += I(f"""buffer_store_dwordx4 {v(src,4)}, {v(vOST)}, {sWS}, {so} offen
    buffer_store_dwordx4 {v(src+4,4)}, {v(vOST)}, {sWS}, {so} offen offset:1024""", tag=tag)
    o += I(f"L_fj{n}:")
    return o
def o_flag(part_off):
    n = mode_n[0]; mode_n[0] += 1
    so = 's99'
    o = I(f"s_mov_b32 {so}, {part_off}\ns_mov_b64 exec, 1\ns_cmp_eq_u32 {sMODE}, 1\ns_cbranch_scc1 L_fast{n}")
    o += I(f"buffer_store_dword {v(vNON)}, {v(vFO)}, {sWS}, {so} offen sc1", cond=True)
    o += I(f"s_branch L_fj{n}\nL_fast{n}:", cond=True)
    o += I(f"buffer_store_dword {v(vNON)}, {v(vFO)}, {sWS}, {so} offen")
    o += I(f"L_fj{n}:\ns_mov_b64 exec, -1")
    return o

def finish_o(acc, t, dst, tmp, eps):
    o = I(f"""v_mov_b32 {v(tmp)}, {v(acc+12)}
    v_mov_b32 {v(tmp+1)}, {v(acc+12)}
    v_permlane32_swap_b32 {v(tmp+1)}, {v(tmp)}""")
    if eps: o += I(f"v_add_f32 {v(tmp)}, {H(f2u(1e-6))}, {v(tmp)}")
    o += I(f"""v_rcp_f32 {v(tmp)}, {v(tmp)}
    v_cndmask_b32 {v(acc+12)}, {v(acc+12)}, 0, {sHALF}
    v_mul_f32 {v(tmp)}, {v(tmp)}, {v(vG+t)}""")
    for i in range(8):
        o += I(f"v_mul_f32 {v(acc+2*i)}, {v(acc+2*i)}, {v(tmp)}\nv_mul_f32 {v(acc+2*i+1)}, {v(acc+2*i+1)}, {v(tmp)}")
        o += cvt(dst + i, acc + 2 * i, 1)
    return o

def wo_loads(br):
    srd, base = (sWOA, WOA) if br == 0 else (sWOB, WOB)
    out = []
    for i in range(7):
        out.append(I(f"s_add_u32 m0, {sM2}, {base + i*8192}\ns_mov_b32 {sWOO}, {i*64*896}") +
                   I(f"buffer_load_dwordx4 {v(vWOA)}, {srd}, {sWOO} offen lds\nbuffer_load_dwordx4 {v(vWOA+1)}, {srd}, {sWOO} offen offset:1024 lds", tag='wo'))
    return out

def pathB():
    o = I("L_pathB:")
    o += I(f"""v_lshlrev_b32 v24, 2, v23
    v_sub_u32 v24, v22, v24
    v_mov_b32 v25, {H(f2u(-BIG))}""")
    for r in range(16):
        b = (r & 3) + 8 * (r >> 2)
        o += I(f"""v_cmp_le_i32 vcc, {b}, v24
        v_cndmask_b32 {v(MD+r)}, v25, 0, vcc
        v_cndmask_b32 {v(MF+r)}, 0, v25, vcc""".replace('v_cndmask_b32', 'v_cndmask_b32_e64'))
    o += I(f"""
    v_mov_b32 {v(vC)}, {H(f2u(CB))}
    s_lshl_b32 {sT0}, {sRB}, 1
    s_add_u32 {sT0}, {sT0}, {sTH}
    s_lshl_b32 {sT1}, {sH}, 17
    s_lshl_b32 {sT2}, {sT0}, 12
    s_add_u32 {sT2}, {sT2}, {sT1}
    s_add_u32 {sT2}, {sT2}, {H(WS_K)}
    v_add_u32 {v(vKST)}, {sT2}, {v(vL16)}
    s_lshl_b32 {sT2}, {sH}, 7
    s_lshl_b32 {sT3}, {sT0}, 2
    s_add_u32 {sT3}, {sT3}, {sT2}
    s_add_u32 {sT3}, {sT3}, {WS_FK}
    v_mov_b32 {v(vFST)}, {sT3}
    s_add_u32 {sT0}, {sRB}, {sTH}
    s_cmp_lt_u32 {sT0}, 2
    s_cselect_b32 {sINV}, 1, 0
    s_sub_u32 {sT0}, {sT0}, 2
    s_lshl_b32 {sT3}, {sT0}, 13
    s_add_u32 {sT3}, {sT3}, {sT1}
    s_add_u32 {sT3}, {sT3}, {H(WS_K)}
    v_add_u32 {v(vDMA)}, {sT3}, {v(vL16)}
    s_lshl_b32 {sT3}, {sT0}, 3
    s_add_u32 {sT3}, {sT3}, {sT2}
    s_add_u32 {sT3}, {sT3}, {WS_FK}
    v_and_b32 v24, 1, v0
    v_lshl_add_u32 {v(vPA)}, v24, 2, {sT3}
    s_mul_i32 {sT1}, {sHD}, 24576
    s_lshl_b32 {sT2}, {sTH}, 12
    s_add_u32 {sT2}, {sT2}, {sT1}
    s_add_u32 {sT2}, {sT2}, {VT}
    v_add_u32 {v(vTRR)}, {sT2}, {v(vL16)}
    v_add_u32 {v(vTRW)}, 16384, {v(vTRR)}
    s_lshl_b32 {sT2}, {sTH}, 13
    s_add_u32 s3, {sT2}, {sT1}
    """)
    o += common_tick0()
    KO = KT - VT
    def publish(src, isV):
        so = I(f"s_mov_b32 s99, {H(WS_V - WS_K) if isV else 0}")
        st = [I(f"buffer_store_dwordx4 {v(src+4*q,4)}, {v(vKST)}, {sWS}, s99 offen offset:{q*1024} sc1", tag='stV' if isV else 'stK') for q in range(4)]
        wr = [I(f"ds_write_b128 {v(vTRW)}, {v(src+4*q,4)} offset:{q*1024 + (0 if isV else KO)}", tag='trV' if isV else 'trK') for q in range(4)]
        return [so + st[0]] + st[1:] + wr
    def remote(isV):
        nm = 'V' if isV else 'K'
        base = VT if isV else KT
        r = WAIT('poll') + I(f"s_cmp_eq_u32 {sINV}, 1\ns_cbranch_scc1 L_inv{nm}")
        r += poll_check(nm, 0)
        for hlf in range(2):
            r += I(f"s_add_u32 m0, s3, {base + hlf*4096}\ns_mov_b32 s99, {H((WS_V - WS_K if isV else 0) + hlf*4096)}")
            r += I('\n'.join(f"buffer_load_dwordx4 {v(vDMA)}, {sWS}, s99 offen offset:{q*1024} sc1 lds" for q in range(4)), tag='dma' + nm, cond=True)
        r += I(f"L_invj{nm}:")
        pat = 0 if isV else (f2u(-BIG) & 0xffff0000)
        blk = f"L_inv{nm}:\n    s_add_u32 s99, s3, {base}\n    v_add_u32 v20, s99, {v(vL16)}\n"
        blk += ''.join(f"    v_mov_b32 v{k}, 0\n" for k in (22, 23, 24, 25, 27))
        blk += f"    v_mov_b32 v21, {H(pat)}\n    v_cndmask_b32 v26, 0, v21, {sHALF}\n"
        for q in range(8):
            blk += f"    ds_write_b128 v20, {'v[24:27]' if q & 1 else 'v[22:25]'} offset:{q*1024}\n"
        blk += f"    s_waitcnt lgkmcnt(0)\n    s_branch L_invj{nm}\n"
        spin_blocks.append(blk)
        return r
    pre = {0: xcc_publish(), 2: gate_write(),
           12: WAIT('stK') + flag_store(vFST, 0),
           15: poll_issue() + xcc_issue(),
           17: remote(False) + xcc_check() + I(f"v_add_u32 {v(vPA)}, {WS_FV - WS_FK}, {v(vPA)}\nv_add_u32 {v(vFST)}, {WS_FV - WS_FK}, {v(vFST)}") + pretouch(2),
           19: WAIT('stV') + flag_store(vFST, 0),
           21: poll_issue()}
    fill = {8: cvt(KF, ACC0, 16) + publish(KF, False),
            15: cvt(VF, ACC1, 16) + publish(VF, True)}
    o += phase1(pre, fill)
    o += WAIT('dmaK', 'trK') + I("s_barrier")
    o += I(f"v_add_u32 v29, {KO}, {v(vTRR)}")
    kr = [Ins(f"ds_read_b128 {a(8*u+4*s,4)}, v29 offset:{u*2048+s*1024}") for u in range(10) for s in range(2)]
    qc = []
    for t in range(2):
        qc += cvt(QF + 8 * t, ACC0 + 16 * t, 8)
        qc += I(f"v_cndmask_b32 {v(QF+8*t+6)}, {v(QF+8*t+6)}, 1.0, {sHALF}")
    o += merge(kr[:8], qc[:9])
    o += merge(kr[8:], qc[9:] + gate(0, True, 20) + gate(1, True, 21))
    o += remote(True)
    o += stamp(5)
    def S(t, u, dst, c):
        return [mfma(v(dst,16), a(8*u,4), v(QF+8*t,4), c), mfma(v(dst,16), a(8*u+4,4), v(QF+8*t+4,4), v(dst,16))]
    def mx(src, first, m):
        r = []
        for i in range(8):
            if first and i == 0: r += I(f"v_max_f32 {v(m)}, {v(src)}, {v(src+1)}")
            else: r += I(f"v_max3_f32 {v(m)}, {v(m)}, {v(src+2*i)}, {v(src+2*i+1)}")
        return r
    def mfin(m):
        return I(f"""v_mov_b32 {v(m+1)}, {v(m)}
        v_permlane32_swap_b32 {v(m)}, {v(m+1)}
        v_max_f32 {v(m)}, {v(m)}, {v(m+1)}
        v_mul_f32 {v(vM)}, {H(f2u(-CB))}, {v(m)}""")
    for u in range(11):
        mm = S(0, u, SB + 16 * u, v(MF,16) if u == 0 else (v(MD,16) if u == 8 else '0')) if u < 9 else []
        xx = mx(SB + 16 * (u - 2), u == 2, vM1) if u >= 2 else []
        o += merge(mm, xx)
    o += mfin(vM1)
    o += stamp(6)
    PBUF = [PB, PB + 8, QF]
    def pk(r): return Ins(f"v_pk_fma_f32 {v(r,2)}, {v(r,2)}, {v(vC,2)}, {v(vM,2)} op_sel_hi:[1,0,0]")
    def PV(u_local, n, first):
        p = PBUF[n % 3]
        return [mfma(v(OA,16), a(80+8*u_local,4), v(p,4), '0' if first else v(OA,16)), mfma(v(OA,16), a(80+8*u_local+4,4), v(p+4,4), v(OA,16))]
    def exp_tile(src, nxt, n, mm, extra):
        r = []; p = PBUF[n % 3]
        fd = Feeder(extra); per = max(1, -(-int(fd.left()) // 4))
        for q in range(4):
            if len(mm) == 4: r.append(mm[q])
            elif len(mm) == 2 and q in (0, 2): r.append(mm[q // 2])
            for e in range(4): r += I(f"v_exp_f32 {v(src+4*q+e)}, {v(src+4*q+e)}")
            r += flat(fd.take(per) if q < 3 else fd.rest())
            r += cvt(p + 2 * q, src + 4 * q, 2)
            nq = src + 4 * q + 4 if q < 3 else nxt
            if nq is not None: r += [pk(nq), pk(nq + 2)]
        return r
    vr = [Ins(f"ds_read_b128 {a(80+8*u+4*s,4)}, {v(vTRR)} offset:{u*2048+s*1024}") for u in range(10) for s in range(2)]
    wo = Feeder(wo_loads(0) + wo_loads(1))
    T1 = [MF] + [SB + 16 * k for k in range(7)] + [MD]
    o += [pk(SB), pk(SB + 2)]
    for u in range(9):
        mm = []; ex = []
        if u == 0: mm = S(1, 1, MF, v(MF,16)) + S(1, 9, MD, v(MD,16))
        elif u <= 7: mm = S(1, u + 1, SB + 16 * (u - 1), '0')
        if u == 1: ex += mx(MF, True, vM1 + 2) + mx(MD, False, vM1 + 2)
        elif u >= 2: ex += mx(SB + 16 * (u - 2), False, vM1 + 2)
        if u == 2:
            o += WAIT('dmaV', 'trV') + I("s_barrier") + vr[:4]
            ex = merge(ex, vr[4:12])
        if u == 3: ex = merge(ex, vr[12:])
        if 2 <= u <= 7: mm += PV(u - 2, u - 2, u == 2)
        if u == 8: mm = PV(6, 6, False) + PV(7, 7, False)
        if u >= 1: ex = ex + wo.take(1)
        o += exp_tile(SB + 16 * u, SB + 16 * (u + 1) if u < 8 else None, u, mm, ex)
    o += mfin(vM1 + 2)
    o += stamp(7)
    o += [pk(T1[0]), pk(T1[0] + 2)]
    OF = SB + 16 * 8
    for u in range(9):
        mm = []; ex = []
        n = 9 + u
        if u == 0: mm = PV(8, 8, False)
        if u == 1: ex = finish_o(OA, 0, OF, 20, False) + [o_store(OF, 0, 'o0')]
        if u == 4: ex = [WAIT('o0') + o_flag(0)]
        if 2 <= u <= 7: mm = PV(u - 1, n - 2, u == 2)
        if u == 8: mm = PV(7, n - 2, False) + PV(8, n - 1, False)
        ex = ex + wo.take(1)
        o += exp_tile(T1[u], T1[u + 1] if u < 8 else None, n, mm, ex)
    assert wo.left() == 0
    o += PV(9, 17, False)
    o += finish_o(OA, 1, OF + 8, 20, False) + o_store(OF + 8, 1, 'o1')
    o += stamp(8)
    o += I("s_waitcnt vmcnt(0)") + o_flag(4096)
    return o

AWP, AID = 32, 40
APK = 80
AEP, AEN = 208, 224
def phi(P, EP, EN, outP, outN, tmp, packed, rnd):
    o = []
    L, PADB = vC, vM
    if rnd:
        for i in range(8):
            o += I(f"""v_cvt_pk_bf16_f32 {v(P+2*i+1)}, {v(P+2*i)}, {v(P+2*i+1)}
            v_lshlrev_b32 {v(P+2*i)}, 16, {v(P+2*i+1)}
            v_and_b32 {v(P+2*i+1)}, 0xffff0000, {v(P+2*i+1)}""")
    A, B, C, D, C2, D2 = tmp, tmp + 1, tmp + 2, tmp + 4, tmp + 6, tmp + 8
    for i in range(8):
        if i == 0:
            o += I(f"v_max_f32 {v(A)}, {v(P)}, {v(P+1)}\nv_max_f32_e64 {v(B)}, -{v(P)}, -{v(P+1)}")
        else:
            o += I(f"v_max3_f32 {v(A)}, {v(A)}, {v(P+2*i)}, {v(P+2*i+1)}\nv_max3_f32 {v(B)}, {v(B)}, -{v(P+2*i)}, -{v(P+2*i+1)}")
    o += I(f"""v_permlane32_swap_b32 {v(A)}, {v(B)}
    v_max_f32 {v(A)}, {v(A)}, {v(B)}
    v_mul_f32 {v(C)}, {H(f2u(-LOG2E))}, {v(A)}
    v_mul_f32 {v(D)}, {H(f2u(-LOG2E))}, {v(A)}
    v_permlane32_swap_b32 {v(C)}, {v(D)}
    v_add_f32 {v(C2)}, {v(C)}, {v(PADB)}
    v_add_f32 {v(D2)}, {v(D)}, {v(PADB)}""")
    for i in range(8):
        c, d = (C2, D2) if i >= 6 else (C, D)
        if packed:
            o += I(f"""v_pk_fma_f32 {v(EP+2*i,2)}, {v(P+2*i,2)}, {v(L,2)}, {v(c,2)} op_sel_hi:[1,0,0]
            v_pk_fma_f32 {v(EN+2*i,2)}, {v(P+2*i,2)}, {v(L,2)}, {v(d,2)} op_sel_hi:[1,0,0] neg_lo:[1,0,0] neg_hi:[1,0,0]""")
        else:
            for e in range(2):
                o += I(f"v_fma_f32 {v(EP+2*i+e)}, {v(P+2*i+e)}, {v(L)}, {v(c)}\nv_fma_f32 {v(EN+2*i+e)}, -{v(P+2*i+e)}, {v(L)}, {v(d)}")
        for e in range(2):
            o += I(f"v_exp_f32 {v(EP+2*i+e)}, {v(EP+2*i+e)}\nv_exp_f32 {v(EN+2*i+e)}, {v(EN+2*i+e)}")
    if packed:
        for i in range(1, 8):
            for E, s in ((EP, P), (EN, P + 2)):
                o += I(f"v_pk_add_f32 {v(s,2)}, {v(E,2) if i == 1 else v(s,2)}, {v(E+2*i,2)}")
        o += I(f"v_add_f32 {v(A)}, {v(P)}, {v(P+1)}\nv_add_f32 {v(B)}, {v(P+2)}, {v(P+3)}")
    else:
        for i in range(1, 16):
            for E, s in ((EP, A), (EN, B)):
                o += I(f"v_add_f32 {v(s)}, {v(E) if i == 1 else v(s)}, {v(E+i)}")
    o += I(f"""v_permlane32_swap_b32 {v(A)}, {v(B)}
    v_add_f32 {v(A)}, {v(A)}, {v(B)}
    v_rcp_f32 {v(C)}, {v(A)}
    v_mov_b32 {v(D)}, {v(C)}
    v_permlane32_swap_b32 {v(C)}, {v(D)}""")
    for i in range(8):
        for E, r, out in ((EP, C, outP), (EN, D, outN)):
            if packed:
                o += I(f"v_pk_mul_f32 {v(E+2*i,2)}, {v(E+2*i,2)}, {v(r,2)} op_sel_hi:[1,0]")
            else:
                o += I(f"v_mul_f32 {v(E+2*i)}, {v(E+2*i)}, {v(r)}\nv_mul_f32 {v(E+2*i+1)}, {v(E+2*i+1)}, {v(r)}")
            o += cvt(out + i, E + 2 * i, 1)
    return o

def pathA():
    o = []
    o += I(f"""
    v_mov_b32 {v(vC)}, {H(f2u(LOG2E))}
    v_mov_b32 v27, {H(f2u(-BIG))}
    v_cndmask_b32 {v(vM)}, 0, v27, {sHALF}
    v_min_u32 v27, 6, v26
    v_lshl_add_u32 v28, v23, 2, v25
    v_mul_u32_u24 v28, 56, v28
    v_lshl_add_u32 v27, v27, 3, v28
    s_mul_i32 {sT0}, {sHD}, 1568
    s_add_u32 {sT0}, {sT0}, {XR}
    v_add_u32 v69, {sT0}, v27
    v_lshlrev_b32 v24, 2, v23
    v_sub_u32 v24, v22, v24
    v_mov_b32 v27, 0x3f80
    v_mov_b32 v28, 0x3f800000
    """)
    for s in range(2):
        for d in range(4):
            f0 = 16 * s + (2 * d & 3) + 8 * (d >> 1)
            r = AID + 4 * s + d
            o += I(f"""v_cmp_eq_u32 vcc, {f0}, v24
            v_cmp_eq_u32 {sTM}, {f0+1}, v24
            v_cndmask_b32_e64 {v(r)}, 0, v27, vcc
            v_cndmask_b32_e64 {v(r)}, {v(r)}, v28, {sTM}""")
    o += I(f"""
    s_lshl_b32 {sT0}, {sH}, 1
    s_add_u32 {sT0}, {sT0}, {sTH}
    s_lshl_b32 {sT1}, {sT0}, 15
    s_add_u32 {sT1}, {sT1}, {H(WS_KP)}
    v_add_u32 {v(vDMA)}, {sT1}, {v(vL16)}
    s_lshl_b32 {sT2}, {sRB}, 11
    v_add_u32 {v(vKST)}, {sT2}, {v(vDMA)}
    s_lshl_b32 {sT1}, {sT0}, 7
    s_add_u32 {sT1}, {sT1}, {WS_FP}
    v_and_b32 v24, 15, v0
    v_lshl_add_u32 {v(vPA)}, v24, 2, {sT1}
    s_lshl_b32 {sT2}, {sRB}, 2
    s_add_u32 {sT1}, {sT1}, {sT2}
    v_mov_b32 {v(vFST)}, {sT1}
    s_add_u32 {sT0}, {sM4}, {G2}
    v_add_u32 {v(vTRW)}, {sT0}, {v(vL16)}
    v_xor_b32 {v(vTRR)}, 0x2000, {v(vTRW)}
    s_cmp_eq_u32 {sTH}, 1
    s_cselect_b64 s[100:101], -1, 0
    s_mov_b32 {sINV}, s100
    """)
    o += common_tick0()
    wp = WAIT('phi')
    wpr = [Ins(f"ds_read_b64_tr_b16 {v(AWP+4*s+2*jj,2)}, v69 offset:{(16*s+8*jj)*56}") for s in range(2) for jj in range(2)]
    KFa = 240
    PH = 144
    def proj(src, t): return [mfma(v(APK+16*t,16), v(AWP,4), v(src+8*t,4), '0'), mfma(v(APK+16*t,16), v(AWP+4,4), v(src+8*t+4,4), v(APK+16*t,16))]
    ks = cvt(KFa, ACC0, 16) + proj(KFa, 0) + proj(KFa, 1)
    for t in range(2):
        ks += phi(APK + 16 * t, AEP, AEN, PH + 16 * t, PH + 16 * t + 8, vT, False, cfg.round_pk)
        if t == 1:
            pass
        tr = []
        for sg, E in ((0, AEP), (1, AEN)):
            p = PH + 16 * t + 8 * sg
            tr += [mfma(v(E,16), v(p,4), v(AID,4), '0'), mfma(v(E,16), v(p+4,4), v(AID+4,4), v(E,16))]
        ks += tr + cvt(APK + 16 * t, AEP, 8) + cvt(APK + 16 * t + 8, AEN, 8)
    fd = Feeder(ks); per = fd.left() / 7.0
    fill = {}
    for g in range(8, 15): fill[g] = fd.take(per) if g < 14 else fd.rest()
    VFa = 240
    kv = cvt(VFa, ACC1, 16)
    for sg, E in ((0, AEP), (1, AEN)):
        for t in range(2):
            for s in range(2):
                kv.append(mfma(v(E,16), v(APK+16*t+8*sg+4*s,4), v(VFa+8*t+4*s,4), '0' if (t == 0 and s == 0) else v(E,16)))
    fill[15] = kv
    sel = I(f"s_mov_b32 s100, {sINV}\ns_mov_b32 s101, {sINV}")
    for i in range(16):
        sel += I(f"v_cndmask_b32_e64 {v(APK+16+i)}, {v(AEN+i)}, {v(AEP+i)}, s[100:101]")
        if i % 4 == 3: sel += I(f"ds_write_b128 {v(vTRW)}, {v(APK+16+i-3,4)} offset:{(i//4)*1024}", tag='B17')
    for i in range(16): sel += I(f"v_cndmask_b32_e64 {v(APK+i)}, {v(AEP+i)}, {v(AEN+i)}, s[100:101]")
    fill[16] = sel
    cmb = [Ins(f"ds_read_b128 {v(AEP+4*q,4)}, {v(vTRR)} offset:{q*1024}") for q in range(4)]
    cmb2 = []
    for i in range(16): cmb2 += I(f"v_add_f32 {v(APK+i)}, {v(APK+i)}, {v(AEP+i)}")
    cmb2 += cvt(AEN, APK, 8)
    cmb2 += I(f"buffer_store_dwordx4 {v(AEN,4)}, {v(vKST)}, {sWS}, 0 offen sc1\nbuffer_store_dwordx4 {v(AEN+4,4)}, {v(vKST)}, {sWS}, 0 offen offset:1024 sc1", tag='stP')
    fill[17] = cmb2
    wob = wo_loads(1)
    fill[19] = wob[:2]; fill[20] = wob[2:4]; fill[21] = wob[4:]
    pre = {0: xcc_publish(), 2: gate_write(), 3: wpr, 15: xcc_issue(), 17: cmb, 18: xcc_check() + pretouch(1),
           20: WAIT('stP') + flag_store(vFST, 0)}
    pre[1] = wp
    o += phase1(pre, fill)
    QFa = 240
    PQP = 112
    o += I("s_barrier")
    qs = []
    for t in range(2):
        qs += cvt(QFa + 8 * t, ACC0 + 16 * t, 8) + I(f"v_cndmask_b32 {v(QFa+8*t+6)}, {v(QFa+8*t+6)}, 0, {sHALF}")
        qs += proj(QFa, t)
    qs += gate(0, False, 20) + gate(1, False, 21)
    o += qs
    p0 = phi(APK, AEP, AEN, PQP, PQP + 8, vT, True, cfg.round_pq)
    o += p0[:len(p0) // 2] + poll_issue() + p0[len(p0) // 2:]
    o += poll_check('P')
    o += stamp(5)
    pl = []
    for k in range(16):
        g = I(f"s_lshl_b32 s99, {sR}, 14\ns_xor_b32 s99, s99, {k*2048}") if k % 2 == 0 else []
        for s in range(2):
            pl.append(g + I(f"buffer_load_dwordx4 {a(8*k+4*s,4)}, {v(vDMA)}, {sWS}, s99 offen offset:{(k%2)*2048+s*1024} sc1")); g = []
    o += flat(pl[:12])
    p1 = phi(APK + 16, AEP, AEN, PQP + 16, PQP + 24, vT, True, cfg.round_pq)
    o += merge(p1, pl[12:20])
    o += stamp(6)
    KS = 144
    sm = [mfma(v(KS,16), v(AID+4*s,4), a(8*k+4*s,4), '0' if (k == 0 and s == 0) else v(KS,16)) for k in range(16) for s in range(2)]
    o += merge(sm[:12], pl[20:])
    o += flat(wo_loads(0))
    o += sm[12:]
    KVO, KVX = 176, 184
    o += cvt(KVO, KS, 8)
    o += I(f"v_subrev_u32 {v(vTRW)}, {G2-G3}, {v(vTRW)}\nv_subrev_u32 {v(vTRR)}, {G2-G3}, {v(vTRR)}")
    o += I(f"ds_write_b128 {v(vTRW)}, {v(KVO,4)}\nds_write_b128 {v(vTRW)}, {v(KVO+4,4)} offset:1024", tag='kx')
    o += WAIT('kx') + I("s_barrier")
    o += I(f"ds_read_b128 {v(KVX,4)}, {v(vTRR)}\nds_read_b128 {v(KVX+4,4)}, {v(vTRR)} offset:1024")
    o += stamp(7)
    KP_, KN_ = 192, 200
    o += I(f"s_mov_b32 s100, {sINV}\ns_mov_b32 s101, {sINV}")
    for i in range(8):
        o += I(f"v_cndmask_b32_e64 {v(KP_+i)}, {v(KVO+i)}, {v(KVX+i)}, s[100:101]\nv_cndmask_b32_e64 {v(KN_+i)}, {v(KVX+i)}, {v(KVO+i)}, s[100:101]")
    for t in range(2):
        d = v(APK + 16 * t, 16)
        o += [mfma(d, v(KP_,4), v(PQP+16*t,4), '0'), mfma(d, v(KP_+4,4), v(PQP+16*t+4,4), d),
              mfma(d, v(KN_,4), v(PQP+16*t+8,4), d), mfma(d, v(KN_+4,4), v(PQP+16*t+12,4), d)]
    for t in range(2):
        o += finish_o(APK + 16 * t, t, AEP + 8 * t, 20, True) + o_store(AEP + 8 * t, t, 'o%d' % t)
    o += stamp(8)
    o += I("s_waitcnt vmcnt(0)") + o_flag(0)
    o += I("s_branch L_phase3")
    return o

def phase3():
    o = I(f"""L_phase3:
    s_cmp_ge_u32 {sJ}, 28
    s_cbranch_scc1 L_tail
    s_mul_i32 {sT0}, {sJ}, 37
    s_lshr_b32 {sT0}, {sT0}, 8
    s_mul_i32 {sT1}, {sT0}, 7
    s_sub_u32 s73, {sJ}, {sT1}
    s_lshl_b32 {sT1}, {sXCD}, 2
    s_add_u32 s74, {sT1}, {sT0}
    """)
    o += I(f"""
    s_xor_b32 s75, {sTH}, 1
    s_lshl_b32 s76, {sTH}, 1
    s_lshl_b32 {sT0}, s74, 7
    s_lshl_b32 {sT1}, {sHD}, 5
    s_add_u32 {sT0}, {sT0}, {sT1}
    s_add_u32 {sT0}, {sT0}, {WS_FO}
    s_lshl_b32 {sT1}, s75, 12
    s_add_u32 {sT1}, {sT1}, {sT0}
    v_and_b32 v20, 7, v0
    v_lshl_add_u32 {v(vPA)}, v20, 2, {sT1}
    """)
    o += poll_issue()
    o += I(f"""
    s_lshl_b32 {sT1}, s76, 12
    s_add_u32 {sT1}, {sT1}, {sT0}
    v_lshl_add_u32 v16, v20, 2, {sT1}
    s_lshl_b32 {sT0}, s74, 16
    s_lshl_b32 {sT1}, {sTH}, 15
    s_add_u32 {sT0}, {sT0}, {sT1}
    s_lshl_b32 {sT1}, {sHD}, 14
    s_add_u32 {sT0}, {sT0}, {sT1}
    s_add_u32 {sT0}, {sT0}, {H(WS_O)}
    s_lshl_b32 s77, s75, 21
    s_add_u32 s77, s77, {sT0}
    s_lshl_b32 s78, {sTH}, 21
    s_add_u32 s78, s78, {sT0}
    v_and_b32 v21, 63, v0
    v_lshrrev_b32 v23, 5, v21
    v_bfe_u32 v25, v21, 2, 2
    v_bfe_u32 v26, v21, 4, 1
    v_and_b32 v27, 3, v21
    v_lshl_add_u32 v26, v26, 2, v27
    v_lshrrev_b32 v27, 1, v25
    v_lshlrev_b32 v27, 6, v27
    v_lshl_add_u32 v27, v26, 3, v27
    v_lshl_add_u32 v28, v25, 7, v27
    s_mul_i32 {sT0}, {sHD}, {8*28*128}
    s_mul_i32 {sT1}, s75, {WOB}
    s_add_u32 {sT1}, {sT1}, {sT0}
    v_add_u32 v34, {sT1}, v28
    v_lshl_add_u32 v32, v23, 9, v34
    v_xor_b32 v33, 64, v32
    v_xor_b32 v35, 64, v34
    s_mul_i32 {sT1}, {sTH}, {WOB}
    s_add_u32 {sT1}, {sT1}, {sT0}
    v_add_u32 v38, {sT1}, v28
    v_lshl_add_u32 v36, v23, 9, v38
    v_xor_b32 v37, 64, v36
    v_xor_b32 v39, 64, v38
    s_barrier
    """)
    def oloads(part, sreg):
        r = []
        for k in range(4):
            g = I(f"s_add_u32 s99, {sreg}, {k*4096}")
            for q in range(4):
                r.append(g + I(f"buffer_load_dwordx4 {a(64*part+16*k+4*q,4)}, {v(vL16)}, {sWS}, s99 offen offset:{q*1024} sc1")); g = []
        return r
    WB = 48
    AC = 128
    def worb(part, i):
        r = []; b = WB + 16 * ((8 * part + i) % 4)
        for s in range(2):
            for ct in range(2):
                for jj in range(2):
                    ar = 32 + 4 * part + ct + (2 if (s == 1 and jj == 1) else 0)
                    r += I(f"ds_read_b64_tr_b16 {v(b+8*s+4*ct+2*jj,2)}, {v(ar)} offset:{i*3584+s*2048+jj*1024}")
        return r
    def womm(part, i):
        r = []; b = WB + 16 * ((8 * part + i) % 4)
        for s in range(2):
            for ct in range(2):
                d = v(AC + 16 * ct, 16)
                r.append(mfma(d, v(b+8*s+4*ct,4), a(64*part+8*i+4*s,4), '0' if (part == 0 and i == 0 and s == 0) else d))
        return r
    o += worb(0, 0)
    o += poll_check('O1')
    o += flat(oloads(0, 's77'))
    o += I(f"v_mov_b32 {v(vPA)}, v16") + poll_issue()
    o += stamp(9)
    seq = [(p, i) for p in range(2) for i in range(8)]
    for n, (p, i) in enumerate(seq):
        nxt = worb(*seq[n + 1]) if n + 1 < 16 else []
        if n == 7:
            o += poll_check('O2') + flat(oloads(1, 's78')) + stamp(10)
        o += merge(womm(p, i), nxt)
    o += I(f"""
    s_cmp_eq_u32 {sHD}, 1
    s_cselect_b64 s[100:101], -1, 0
    s_add_u32 {sT0}, {sM4}, {G3}
    v_add_u32 v40, {sT0}, {v(vL16)}
    v_xor_b32 v41, 0x1000, v40
    s_lshl_b32 {sT0}, s74, 6
    s_lshl_b32 {sT1}, {sTH}, 5
    s_add_u32 {sT0}, {sT0}, {sT1}
    s_mul_i32 {sT0}, {sT0}, 896
    s_lshl_b32 {sT1}, s73, 7
    s_add_u32 {sT0}, {sT0}, {sT1}
    s_lshl_b32 {sT1}, {sHD}, 6
    s_add_u32 {sT0}, {sT0}, {sT1}
    v_and_b32 v22, 31, v0
    v_mul_u32_u24 v22, 896, v22
    v_lshl_add_u32 v22, v23, 4, v22
    v_add_u32 v42, {sT0}, v22
    """)
    for i in range(16):
        o += I(f"v_cndmask_b32_e64 {v(48+i)}, {v(AC+16+i)}, {v(AC+i)}, s[100:101]")
        if i % 4 == 3: o += I(f"ds_write_b128 v40, {v(48+i-3,4)} offset:{(i//4)*1024}", tag='cx')
    for i in range(16): o += I(f"v_cndmask_b32_e64 {v(64+i)}, {v(AC+i)}, {v(AC+16+i)}, s[100:101]")
    o += WAIT('cx') + I("s_barrier")
    o += [Ins(f"ds_read_b128 {v(80+4*q,4)}, v41 offset:{q*1024}") for q in range(4)]
    for u in range(2):
        for i in range(4): o += I(f"v_pk_add_f32 {v(64+8*u+2*i,2)}, {v(64+8*u+2*i,2)}, {v(80+8*u+2*i,2)}")
        o += cvt(96 + 4 * u, 64 + 8 * u, 4)
        o += I(f"""v_permlane32_swap_b32 {v(96+4*u)}, {v(96+4*u+2)}
        v_permlane32_swap_b32 {v(96+4*u+1)}, {v(96+4*u+3)}
        buffer_store_dwordx4 {v(96+4*u,4)}, v42, {sOUT}, 0 offen offset:{32*u}""")
    o += stamp(11)
    return o

def tail():
    t = f"""L_tail:
    s_cmp_lg_u32 s2, 255
    s_cbranch_scc1 L_fin
    s_cmp_lg_u32 {sWV}, 0
    s_cbranch_scc1 L_fin
    v_add_u32 v20, {WS_XCC}, {v(vL16)}
    s_lshl_b32 {sT0}, {sNONCE}, 4
    s_mov_b32 {sSPIN}, 0
L_tail_l:
    buffer_load_dwordx4 v[24:27], v20, {sWS}, 0 offen sc1
    s_add_u32 {sSPIN}, {sSPIN}, 1
    s_waitcnt vmcnt(0)
    v_xor_b32 v24, {sT0}, v24
    v_xor_b32 v25, {sT0}, v25
    v_xor_b32 v26, {sT0}, v26
    v_xor_b32 v27, {sT0}, v27
    v_or3_b32 v24, v24, v25, v26
    v_or_b32 v24, v24, v27
    v_cmp_lt_u32 vcc, 15, v24
    s_cmp_gt_u32 {sSPIN}, {SPIN}
    s_cbranch_scc1 L_tail_go
    s_cbranch_vccnz L_tail_l
L_tail_go:
    v_mov_b32 v20, {WS_E}
    s_mov_b64 exec, 1
    buffer_store_dword {v(vNON)}, v20, {sWS}, 0 offen sc1
    s_mov_b64 exec, -1
L_fin:
"""
    if cfg.stamps:
        t += f"""    s_memrealtime s[98:99]
    s_waitcnt lgkmcnt(0)
    v_writelane_b32 v31, s98, 31
    v_writelane_b32 v31, {sMODE}, 29
    s_lshl_b32 {sT0}, s2, 2
    s_add_u32 {sT0}, {sT0}, {sWV}
    s_lshl_b32 {sT0}, {sT0}, 8
    s_add_u32 {sT0}, {sT0}, {H(WS_STAMP)}
    v_lshrrev_b32 v20, 2, {v(vL16)}
    v_add_u32 v20, {sT0}, v20
    buffer_store_dword v31, v20, {sWS}, 0 offen
"""
    t += "L_end:\n    s_endpgm\n"
    return t

def build(code_len):
    spin_blocks.clear(); mode_n[0] = 0
    stats = {}
    st = State()
    pro = finalize(prologue(code_len), st, stats)
    sa = st.fork(); sb = st.fork()
    A = finalize(pathA(), sa, stats)
    B = finalize(pathB(), sb, stats)
    s3 = State(); s3.hist = list(sb.hist)
    for s in (sa, sb):
        assert all(o.kind == 'vst' for o in s.vm) and not s.lg, (s.vm, s.lg)
    P3 = finalize(phase3(), s3, stats)
    body = text(pro) + text(A) + text(B) + text(P3) + "    s_branch L_fin\n" + ''.join(spin_blocks) + tail()
    hdr = open('cdna_kernels/%s.s.ref' % NAME).read().split('; Override launch')[0]
    src = hdr + f"""; Generated by work/gen.py (hand-written generator; no compiler output).
; @launch grid=(256,1,1) block=(256,1,1) lds={LDS_BYTES}
.amdgcn_target "amdgcn-amd-amdhsa--gfx950"
.text
.globl {NAME}_kernel
.p2align 8
.type {NAME}_kernel,@function
{NAME}_kernel:
{body}L_code_end:
.section .rodata,"a"
.p2align 6
.amdhsa_kernel {NAME}_kernel
  .amdhsa_next_free_vgpr 512
  .amdhsa_next_free_sgpr 102
  .amdhsa_accum_offset 256
  .amdhsa_group_segment_fixed_size 0
  .amdhsa_kernarg_size 88
  .amdhsa_user_sgpr_count 2
  .amdhsa_user_sgpr_kernarg_segment_ptr 1
  .amdhsa_system_sgpr_workgroup_id_x 1
.end_amdhsa_kernel
"""
    info = dict(stats, pro=cost(pro), A=cost(A), B=cost(B), P3=cost(P3))
    return src, info

def code_size(src):
    import subprocess, os, tempfile
    d = tempfile.mkdtemp()
    open(d + '/k.s', 'w').write(src)
    r = subprocess.run(['clang', '-x', 'assembler', '-target', 'amdgcn-amd-amdhsa', '-mcpu=gfx950', '-c', d + '/k.s', '-o', d + '/k.o'], capture_output=True, text=True)
    if r.returncode: raise RuntimeError(r.stderr[:3000])
    r = subprocess.run(['llvm-objdump', '-h', d + '/k.o'], capture_output=True, text=True)
    for l in r.stdout.split('\n'):
        p = l.split()
        if len(p) > 2 and p[1] == '.text': return int(p[2], 16)

def generate(**kw):
    for k, val in kw.items(): setattr(cfg, k, val)
    src, _ = build(0x4000)
    n = code_size(src)
    src, info = build(n)
    assert code_size(src) == n and n <= 32768, n
    info['bytes'] = n
    return src, info

if __name__ == '__main__':
    out = sys.argv[1] if len(sys.argv) > 1 else 'cdna_kernels/%s.s' % NAME
    kw = {}
    for x in sys.argv[2:]:
        k, val = x.split('='); kw[k] = eval(val)
    src, info = generate(**kw)
    open(out, 'w').write(src)
    print(out, info)
```

```python
import sys, math, struct
sys.path.insert(0, 'work')
from asmlib import *

NAME = 'gated_mix__linear_kernel_hedgehog__sliding_block__prompt'
def f2u(x): return struct.unpack('<I', struct.pack('<f', x))[0]
def H(x): return '0x%x' % (x & 0xffffffff)

class Cfg:
    stamps = False
    round_pq = True
    round_pk = False
    force_slow = False
    rot = True
    perturb = None
cfg = Cfg()

WQ, G3, G0, G1, G2, XR = 0, 57344, 81920, 106496, 131072, 155648
GRP = [G0, G1, G2, G3]
WV = G3
KT = G1 + 8192
VT = G3
WOA, WOB = WQ, G1
LDS_BYTES = 163840
BASES = [0, 57344, 114688]
WS_E, WS_XCC, WS_FK, WS_FV, WS_FP, WS_FO = 0, 0x1000, 0x2000, 0x3000, 0x4000, 0x6000
WS_K, WS_V, WS_KP, WS_O = 0x100000, 0x300000, 0x500000, 0x600000
WS_STAMP = 0xA00000
WS_BYTES = 0xB00000
OOB = 0x7f000000
SPIN = 200000
sX, sW, sWS, sWOA, sWOB, sOUT, sPHI, sGATE = ('s[%d:%d]' % (b, b + 3) for b in (28, 32, 36, 40, 44, 48, 52, 56))
sNONCE, sXW = 's26', 's27'
sXCD, sJ, sP, sBR, sR, sRB, sWV, sTH, sHD, sH, sROT, sM4, sM2 = ('s%d' % i for i in range(60, 73))
sXO = ['s%d' % i for i in range(73, 80)]
sWO = ['s%d' % i for i in range(80, 87)]
sT0, sT1, sT2 = 's87', 's88', 's89'
sHALF = 's[90:91]'
sMODE, sSPIN = 's92', 's93'
sTM = 's[94:95]'
sINV = 's96'
sWOO = 's97'
sT3 = 's98'
def v(i, n=1): return 'v%d' % i if n == 1 else 'v[%d:%d]' % (i, i + n - 1)
def a(i, n=1): return 'a%d' % i if n == 1 else 'a[%d:%d]' % (i, i + n - 1)
vL16 = 1
vWOA = 2
vG = 4
vOST = 6
vFO = 7
vNON = 8
vPOLL = 9
vPA = 10
vC = 12
vM = 14
vM1 = 16
vT = 20
QF, PB, OA, MD, MF, SB = 32, 48, 64, 80, 96, 112
WF, ACC0, ACC1, KF, VF = 112, 144, 176, 208, 224
vXA = 48
vWA = 52
vXR = 54
vWR = 62
vKST = 65
vFST = 66
vTRW = 67
vTRR = 11
vDMA = 68

LOG2E = 1.4426950408889634
CB = LOG2E / math.sqrt(28.0)
BIG = 1e30

stamp_n = [0]
def stamp(i):
    if not cfg.stamps: return []
    return I(f"""s_memtime s[100:101]
    s_waitcnt lgkmcnt(0)
    v_writelane_b32 v31, s100, {i}""")

def lds_sel(regs, bases, off):
    for r, b in reversed(list(zip(regs, bases))):
        if off >= b:
            assert off - b < 65536
            return r, off - b
    raise ValueError

def mfma(d, A, B, c): return Ins(f"v_mfma_f32_32x32x16_bf16 {d}, {A}, {B}, {c}")

def prologue(code_len):
    o = I(f"""
    s_cmp_ge_u32 s2, 256
    s_cbranch_scc1 L_end
    s_load_dwordx8 s[4:11], s[0:1], 0
    s_load_dwordx8 s[12:19], s[0:1], 32
    s_load_dwordx4 s[20:23], s[0:1], 64
    s_load_dwordx2 s[24:25], s[0:1], 80
    """)
    if cfg.stamps: o += I("s_memtime s[100:101]\ns_memrealtime s[98:99]")
    o += I(f"""
    s_getpc_b64 {sTM}
    v_lshrrev_b32 v20, 6, v0
    s_and_b32 {sXCD}, s2, 7
    v_readfirstlane_b32 {sWV}, v20
    s_lshr_b32 {sJ}, s2, 3
    v_and_b32 v21, 63, v0
    s_and_b32 s94, s94, 0xffffff00
    s_lshl_b32 {sT0}, {sJ}, 2
    s_add_u32 {sT0}, {sT0}, {sWV}
    s_lshl_b32 {sT0}, {sT0}, 8
    v_and_b32 v22, 1, v0
    v_lshlrev_b32 v22, 7, v22
    v_add_u32 v22, {sT0}, v22
    v_min_u32 v22, {H(code_len - 4)}, v22
    global_load_dword v30, v22, {sTM}
    s_and_b32 {sP}, {sJ}, 7
    s_bfe_u32 {sBR}, {sJ}, 0x10003
    s_lshr_b32 {sR}, {sJ}, 4
    s_lshl_b32 {sRB}, {sXCD}, 1
    s_add_u32 {sRB}, {sRB}, {sR}
    s_lshr_b32 {sTH}, {sWV}, 1
    s_and_b32 {sHD}, {sWV}, 1
    s_lshl_b32 {sH}, {sP}, 1
    s_add_u32 {sH}, {sH}, {sHD}
    s_lshl_b32 {sM4}, {sWV}, 12
    s_lshl_b32 {sM2}, {sWV}, 11
    """)
    if cfg.rot:
        o += I(f"""
        s_and_b32 {sROT}, {sP}, 1
        s_lshl_b32 {sROT}, {sROT}, 1
        s_xor_b32 {sT0}, {sR}, {sBR}
        s_add_u32 {sROT}, {sROT}, {sT0}
        s_mul_i32 {sROT}, {sROT}, 7
        s_lshr_b32 {sROT}, {sROT}, 2
        """)
    else:
        o += I(f"s_mov_b32 {sROT}, 0")
    o += I(f"""
    v_lshrrev_b32 v22, 3, v21
    v_and_b32 v23, 7, v21
    v_lshrrev_b32 v24, 4, v21
    v_xor_b32 v25, v23, v24
    v_mul_u32_u24 v26, 896, v22
    s_lshl_b32 {sT0}, {sRB}, 7
    s_lshl_b32 {sT1}, {sWV}, 5
    s_add_u32 {sT0}, {sT0}, {sT1}
    s_mul_i32 {sT0}, {sT0}, 896
    v_add_u32 v26, {sT0}, v26
    v_lshl_add_u32 {v(vXA)}, v25, 4, v26
    v_xor_b32 v25, 4, v25
    v_lshl_add_u32 {v(vXA+1)}, v25, 4, v26
    v_add_u32 {v(vXA+2)}, {2*(7168-1024)}, {v(vXA)}
    v_add_u32 {v(vXA+1)}, {7168-1024}, {v(vXA+1)}
    v_add_u32 {v(vXA+3)}, {2*(7168-1024)}, {v(vXA+1)}
    v_and_b32 v25, 1, v24
    v_lshlrev_b32 v25, 2, v25
    v_xor_b32 v25, v25, v23
    v_mul_u32_u24 v26, 2688, v22
    s_mul_i32 {sT0}, {sWV}, {16*2688}
    s_mul_i32 {sT1}, {sP}, 112
    s_add_u32 {sT0}, {sT0}, {sT1}
    v_add_u32 v26, {sT0}, v26
    v_lshl_add_u32 v26, v25, 4, v26
    v_cmp_eq_u32 vcc, 7, v25
    v_mov_b32 v27, {H(OOB)}
    v_add_u32 v28, {8*2688-1024}, v26
    v_cndmask_b32 {v(vWA)}, v26, v27, vcc
    v_cndmask_b32 {v(vWA+1)}, v28, v27, vcc
    v_lshlrev_b32 {v(vL16)}, 4, v21
    """)
    def chunk(i):
        return I(f"""
        s_add_u32 {sT0}, {sROT}, {i}
        s_cmp_ge_u32 {sT0}, 7
        s_cselect_b32 {sT1}, 7, 0
        s_sub_u32 {sT0}, {sT0}, {sT1}
        s_lshl_b32 {sXO[i]}, {sT0}, 7
        s_mul_i32 {sWO[i]}, {sT0}, {64*2688}
        """)
    o += chunk(0) + chunk(1)
    o += I(f"""
    s_mov_b32 s30, 1835008
    s_mov_b32 s31, 0x20000
    s_mov_b32 s34, 1204224
    s_mov_b32 s35, 0x20000
    s_cmp_eq_u32 {sBR}, 1
    s_waitcnt lgkmcnt(0)
    s_load_dword {sNONCE}, s[24:25], {WS_E}
    s_mov_b32 s28, s4
    s_mov_b32 s29, s5
    s_cselect_b32 s32, s14, s6
    s_cselect_b32 s33, s15, s7
    """)
    if cfg.stamps: o += I("v_writelane_b32 v31, s100, 0\nv_writelane_b32 v31, s98, 30")
    o += flat(loads(0))
    o += I(f"""
    s_mov_b32 s36, s24
    s_mov_b32 s37, s25
    s_mov_b32 s38, {H(WS_BYTES)}
    s_mov_b32 s39, 0x20000
    s_cmp_lt_u32 {sJ}, 28
    s_cselect_b32 s42, 401408, 0
    s_cselect_b32 s46, 401408, 0
    s_mov_b32 s40, s10
    s_mov_b32 s41, s11
    s_mov_b32 s43, 0x20000
    s_mov_b32 s44, s16
    s_mov_b32 s45, s17
    s_mov_b32 s47, 0x20000
    s_mov_b32 s48, s20
    s_mov_b32 s49, s21
    s_mov_b32 s50, 1835008
    s_mov_b32 s51, 0x20000
    s_cmp_eq_u32 {sBR}, 0
    s_cselect_b32 s54, 25088, 0
    s_mov_b32 s52, s8
    s_mov_b32 s53, s9
    s_mov_b32 s55, 0x20000
    s_mov_b32 s56, s18
    s_mov_b32 s57, s19
    s_mov_b32 s58, 896
    s_mov_b32 s59, 0x20000
    s_mov_b32 s90, 0
    s_mov_b32 s91, -1
    """)
    o += I(f"""
    v_add_u32 v26, 256, v0
    v_cmp_gt_u32 vcc, 192, v0
    s_lshl_b32 {sT0}, {sROT}, 6
    s_mul_i32 {sT1}, {sP}, 3136
    v_cndmask_b32 v26, v0, v26, vcc
    v_add_u32 v27, {sT0}, v0
    v_add_u32 v28, {sT0}, v26
    v_subrev_u32 v29, 448, v27
    v_min_u32 v27, v27, v29
    v_subrev_u32 v29, 448, v28
    v_min_u32 v28, v28, v29
    v_lshlrev_b32 v27, 1, v27
    v_lshlrev_b32 v28, 1, v28
    buffer_load_ushort v72, v27, {sGATE}, 0 offen
    buffer_load_ushort v76, v28, {sGATE}, 0 offen
    s_lshl_b32 {sT2}, {sWV}, 10
    s_add_u32 {sT1}, {sT1}, {sT2}
    s_add_u32 m0, {sT2}, {XR}
    v_bfe_u32 v27, v0, 1, 1
    """)
    o += I(f"buffer_load_dwordx4 {v(vL16)}, {sPHI}, {sT1} offen lds", tag='phi')
    o += flat(loads(1))
    for i in range(2, 7): o += chunk(i)
    o += I(f"""
    v_lshlrev_b32 v27, 6, v27
    v_xor_b32 v27, 112, v27
    v_lshl_add_u32 v70, v0, 7, v27
    v_lshl_add_u32 v71, v26, 7, v27
    v_mov_b32 v73, 0
    v_mov_b32 v75, 0
    v_mov_b32 v77, 0
    v_mov_b32 v79, 0
    """)
    o += I(f"""
    v_and_b32 v22, 31, v21
    v_lshrrev_b32 v23, 5, v21
    v_bfe_u32 v24, v21, 1, 3
    v_xor_b32 v24, v24, v23
    v_lshlrev_b32 v24, 4, v24
    v_lshl_add_u32 v24, v22, 7, v24
    s_lshl_b32 {sT0}, {sTH}, 13
    s_add_u32 {sT0}, {sT0}, {BASES[1]}
    v_add_u32 {v(vXR)}, {sT0}, v24
    v_xor_b32 {v(vXR+1)}, 32, {v(vXR)}
    v_xor_b32 {v(vXR+2)}, 64, {v(vXR)}
    v_xor_b32 {v(vXR+3)}, 96, {v(vXR)}
    """)
    for s in range(4): o += I(f"v_add_u32 {v(vXR+4+s)}, {BASES[2]-BASES[1]}, {v(vXR+s)}")
    o += I(f"""
    v_bfe_u32 v25, v21, 2, 2
    v_bfe_u32 v26, v21, 4, 1
    v_and_b32 v27, 3, v21
    v_lshl_add_u32 v26, v26, 2, v27
    s_mul_i32 {sT0}, {sHD}, 56
    s_lshl_b32 {sT1}, {sHD}, 3
    s_sub_u32 {sT1}, 120, {sT1}
    v_lshlrev_b32 v27, 3, v26
    v_add_u32 v27, {sT0}, v27
    v_mov_b32 v28, {sT1}
    v_cmp_eq_u32 vcc, 7, v26
    v_lshrrev_b32 v29, 1, v25
    v_lshlrev_b32 v29, 6, v29
    v_cndmask_b32 v27, v27, v28, vcc
    v_xor_b32 v27, v27, v29
    v_lshl_add_u32 v28, v23, 3, v25
    v_lshl_add_u32 {v(vWR)}, v28, 7, v27
    v_add_u32 {v(vWR+1)}, {BASES[1]}, {v(vWR)}
    v_add_u32 {v(vWR+2)}, {BASES[2]}, {v(vWR)}
    """)
    o += I(f"""
    v_cmp_eq_u32 vcc, 28, v22
    v_mov_b32 v27, 0
    v_mov_b32 v28, 1.0
    v_cndmask_b32 {v(ACC1)}, v27, v28, vcc""")
    for i in range(1, 32): o += I(f"v_mov_b32 {v(ACC1+i)}, {v(ACC1)}")
    o += I(f"""
    s_mul_i32 {sT0}, {sJ}, 37
    s_lshr_b32 {sT0}, {sT0}, 8
    s_mul_i32 {sT1}, {sT0}, 7
    s_sub_u32 {sT1}, {sJ}, {sT1}
    s_lshl_b32 {sT1}, {sT1}, 7
    s_mul_i32 {sT2}, {sWV}, {16*896}
    s_add_u32 {sT1}, {sT1}, {sT2}
    v_lshrrev_b32 v27, 3, v21
    v_mul_u32_u24 v27, 896, v27
    v_bfe_u32 v28, v21, 4, 1
    v_lshlrev_b32 v28, 2, v28
    v_and_b32 v29, 7, v21
    v_xor_b32 v28, v28, v29
    v_lshl_add_u32 v27, v28, 4, v27
    v_add_u32 {v(vWOA)}, {sT1}, v27
    v_add_u32 {v(vWOA+1)}, {8*896-1024}, {v(vWOA)}
    s_lshl_b32 {sT0}, {sRB}, 1
    s_add_u32 {sT0}, {sT0}, {sTH}
    s_lshl_b32 {sT1}, {sBR}, 5
    s_add_u32 {sT1}, {sT1}, {sT0}
    s_lshl_b32 {sT2}, {sT1}, 16
    s_lshl_b32 {sT3}, {sH}, 11
    s_add_u32 {sT2}, {sT2}, {sT3}
    s_add_u32 {sT2}, {sT2}, {H(WS_O)}
    v_add_u32 {v(vOST)}, {sT2}, {v(vL16)}
    s_lshl_b32 {sT1}, {sT1}, 7
    s_lshl_b32 {sT3}, {sH}, 2
    s_add_u32 {sT1}, {sT1}, {sT3}
    s_add_u32 {sT1}, {sT1}, {H(WS_FO)}
    v_mov_b32 {v(vFO)}, {sT1}
    s_cmp_eq_u32 {sBR}, 1
    s_cbranch_scc1 L_pathB
    """)
    return o

def loads(g):
    ps, i = divmod(g, 7)
    out = []
    if ps == 0:
        base = GRP[i % 4]
        grp = I(f"s_add_u32 m0, {sM4}, {base}")
        for q in range(4):
            x = I(f"buffer_load_dwordx4 {v(vXA+q)}, {sX}, {sXO[i]} offen offset:{q*1024} lds", tag=f'L{g}')
            out.append(grp + x if q == 0 else x)
        wb, sec = base + 16384, 1
    elif ps == 1: wb, sec = WV + i * 8192, 2
    else: wb, sec = WQ + i * 8192, 0
    d = [I(f"buffer_load_dwordx4 {v(vWA+q)}, {sW}, {sWO[i]} offen offset:{q*1024+sec*896} lds", tag=f'L{g}') for q in range(2)]
    m = I(f"s_add_u32 m0, {sM2}, {wb - sec*896}")
    if ps == 2:
        out.append(m + I("s_mov_b32 exec_lo, 0xf7f77f7f\ns_mov_b32 exec_hi, 0xf7f77f7f") + d[0] + d[1] + I("s_mov_b64 exec, -1"))
    else:
        out.append(m + d[0]); out.append(d[1])
    return out

def reads(g):
    ps, i = divmod(g, 7)
    wb = (GRP[i % 4] + 16384) if ps == 0 else (WV + i * 8192 if ps == 1 else WQ + i * 8192)
    buf = WF + 16 * (g & 1)
    out = []
    for s in range(4):
        for jj in range(2):
            r, off = lds_sel([vWR, vWR + 1, vWR + 2], BASES, wb + s * 2048 + jj * 512)
            out += I(f"ds_read_b64_tr_b16 {v(buf+4*s+2*jj, 2)}, {v(r)} offset:{off}", tag=f'B{g+1}')
        if ps == 0:
            for t in range(2):
                r, off = lds_sel([vXR + s, vXR + 4 + s], BASES[1:], GRP[i % 4] + t * 4096)
                out += I(f"ds_read_b128 {a(32*i+8*s+4*t, 4)}, {v(r)} offset:{off}", tag=f'B{g+1}')
    return out

def mms(g):
    ps, i = divmod(g, 7)
    buf = WF + 16 * (g & 1)
    acc = ACC1 if ps == 1 else ACC0
    out = []
    for s in range(4):
        for t in range(2):
            d = v(acc + 16 * t, 16); w = v(buf + 4 * s, 4); x = a(32 * i + 8 * s + 4 * t, 4)
            c = '0' if (i == 0 and s == 0 and ps != 1) else d
            out.append(mfma(d, x, w, c) if ps == 1 else mfma(d, w, x, c))
    return out

def issue_plan(g):
    if g <= 4: return [g + 2]
    if g == 5: return [7, 8]
    if g == 6: return [9, 10]
    if g + 4 <= 20: return [g + 4]
    return []

def flag_store(vaddr, off, sc1=True, cond=False):
    return I(f"s_mov_b64 exec, 1\nbuffer_store_dword {v(vNON)}, {v(vaddr)}, {sWS}, 0 offen offset:{off}{' sc1' if sc1 else ''}\ns_mov_b64 exec, -1", cond=cond)

spin_blocks = []
def poll_issue(off=0):
    return I(f"buffer_load_dword {v(vPOLL)}, {v(vPA)}, {sWS}, 0 offen offset:{off} sc1", tag='poll')
def poll_check(name, off=0):
    spin_blocks.append(f"""L_spin_{name}:
    s_mov_b32 {sSPIN}, 0
L_spin_{name}_l:
    buffer_load_dword {v(vPOLL)}, {v(vPA)}, {sWS}, 0 offen offset:{off} sc1
    s_add_u32 {sSPIN}, {sSPIN}, 1
    s_waitcnt vmcnt(0)
    v_cmp_ne_u32 vcc, {v(vPOLL)}, {v(vNON)}
    s_cmp_gt_u32 {sSPIN}, {SPIN}
    s_cbranch_scc1 L_go_{name}
    s_cbranch_vccnz L_spin_{name}_l
    s_branch L_go_{name}
""")
    return I(f"""v_cmp_ne_u32 vcc, {v(vPOLL)}, {v(vNON)}
    s_cbranch_vccnz L_spin_{name}
    L_go_{name}:""")

def phase1(pre, fill):
    o = []
    for g in range(22):
        o += WAIT(f'L{g}', f'B{g}')
        if g <= 20: o += I("s_barrier")
        o += flat(pre.get(g, []))
        ld = [u for k in issue_plan(g) for u in loads(k)]
        rd = reads(g) if g <= 20 else []
        mm = mms(g - 1) if g >= 1 else []
        o += merge(mm, rd, ld, fill.get(g, []), span=[1, 0.6, 1, 1])
        if g in (0, 7, 14, 21): o += stamp(1 + g // 7)
    return o

def common_tick0():
    o = I(f"""
    s_mul_i32 {sNONCE}, {sNONCE}, 1664525
    s_add_u32 {sNONCE}, {sNONCE}, 1013904223
    s_getreg_b32 {sT0}, hwreg(HW_REG_XCC_ID)
    s_and_b32 {sT0}, {sT0}, 15
    s_lshl_b32 {sXW}, {sNONCE}, 4
    s_or_b32 {sXW}, {sXW}, {sT0}
    v_mov_b32 {v(vNON)}, {sNONCE}
    """)
    return o

def xcc_publish():
    return I(f"""
    s_lshl_b32 {sT0}, {sXCD}, 7
    s_lshl_b32 {sT1}, {sJ}, 2
    s_add_u32 {sT0}, {sT0}, {sT1}
    s_add_u32 {sT0}, {sT0}, {WS_XCC}
    s_cmp_eq_u32 {sWV}, 0
    s_cselect_b32 {sT0}, {sT0}, {H(OOB)}
    v_mov_b32 v20, {sT0}
    v_mov_b32 v21, {sXW}
    s_mov_b64 exec, 1
    buffer_store_dword v21, v20, {sWS}, 0 offen sc1
    s_mov_b64 exec, -1
    """)

def gate_write():
    return I(f"""v_mov_b32 v74, v72
    v_mov_b32 v78, v76""") + I("ds_write_b128 v70, v[72:75]\nds_write_b128 v71, v[76:79]", tag='B3')

def xcc_issue():
    return I(f"""
    v_and_b32 v20, 31, v0
    s_lshl_b32 {sT0}, {sXCD}, 7
    s_add_u32 {sT0}, {sT0}, {WS_XCC}
    v_lshl_add_u32 v20, v20, 2, {sT0}
    buffer_load_dword v30, v20, {sWS}, 0 offen sc1""")
def xcc_check():
    o = I(f"""
    v_cmp_ne_u32 vcc, {sXW}, v30
    s_cmp_eq_u64 vcc, 0
    s_cselect_b32 {sMODE}, 1, 0""")
    if cfg.force_slow: o += I(f"s_mov_b32 {sMODE}, 0")
    return o

def pretouch(nflag):
    return I(f"""
    v_and_b32 v20, 15, v0
    v_bfe_u32 v21, v0, 4, 1
    v_lshlrev_b32 v20, 7, v20
    v_lshl_add_u32 v20, v21, 15, v20
    v_sub_u32 v22, {v(vOST)}, {v(vL16)}
    v_add_u32 v20, v20, v22
    v_lshl_add_u32 v21, v21, 12, {v(vFO)}
    v_cndmask_b32 v20, v20, {'v21' if nflag == 2 else v(vFO)}, {sHALF}
    buffer_load_dword v30, v20, {sWS}, 0 offen""")

def cvt(dst, src, n=8):
    return [Ins(f"v_cvt_pk_bf16_f32 {v(dst+i)}, {v(src+2*i)}, {v(src+2*i+1)}") for i in range(n)]

def round_bf16(r):
    return I(f"v_cvt_pk_bf16_f32 {v(r)}, {v(r)}, {v(r)}\nv_and_b32 {v(r)}, 0xffff0000, {v(r)}")

def gate(t, isB, tmp):
    src = ACC0 + 16 * t + 12
    g = vG + t
    o = I(f"""v_mov_b32 {v(tmp)}, {v(src)}
    v_mov_b32 {v(g)}, {v(src)}
    v_permlane32_swap_b32 {v(tmp)}, {v(g)}""")
    o += round_bf16(g)
    o += I(f"""v_mul_f32 {v(g)}, {H(f2u(-LOG2E))}, {v(g)}
    v_exp_f32 {v(g)}, {v(g)}
    v_add_f32 {v(g)}, 1.0, {v(g)}
    v_rcp_f32 {v(g)}, {v(g)}""")
    o += round_bf16(g)
    if isB:
        o += I(f"v_sub_f32 {v(g)}, 1.0, {v(g)}") + round_bf16(g)
    return o

mode_n = [0]
def o_store(src, t, tag):
    n = mode_n[0]; mode_n[0] += 1
    so = 's99'
    o = I(f"s_mov_b32 {so}, {t*32768}\ns_cmp_eq_u32 {sMODE}, 1\ns_cbranch_scc1 L_fast{n}")
    o += I(f"""buffer_store_dwordx4 {v(src,4)}, {v(vOST)}, {sWS}, {so} offen sc1
    buffer_store_dwordx4 {v(src+4,4)}, {v(vOST)}, {sWS}, {so} offen offset:1024 sc1""", tag=tag, cond=True)
    o += I(f"s_branch L_fj{n}\nL_fast{n}:", cond=True)
    o += I(f"""buffer_store_dwordx4 {v(src,4)}, {v(vOST)}, {sWS}, {so} offen
    buffer_store_dwordx4 {v(src+4,4)}, {v(vOST)}, {sWS}, {so} offen offset:1024""", tag=tag)
    o += I(f"L_fj{n}:")
    return o
def o_flag(part_off):
    n = mode_n[0]; mode_n[0] += 1
    so = 's99'
    o = I(f"s_mov_b32 {so}, {part_off}\ns_mov_b64 exec, 1\ns_cmp_eq_u32 {sMODE}, 1\ns_cbranch_scc1 L_fast{n}")
    o += I(f"buffer_store_dword {v(vNON)}, {v(vFO)}, {sWS}, {so} offen sc1", cond=True)
    o += I(f"s_branch L_fj{n}\nL_fast{n}:", cond=True)
    o += I(f"buffer_store_dword {v(vNON)}, {v(vFO)}, {sWS}, {so} offen")
    o += I(f"L_fj{n}:\ns_mov_b64 exec, -1")
    return o

def finish_o(acc, t, dst, tmp, eps):
    o = I(f"""v_mov_b32 {v(tmp)}, {v(acc+12)}
    v_mov_b32 {v(tmp+1)}, {v(acc+12)}
    v_permlane32_swap_b32 {v(tmp+1)}, {v(tmp)}""")
    if eps: o += I(f"v_add_f32 {v(tmp)}, {H(f2u(1e-6))}, {v(tmp)}")
    o += I(f"""v_rcp_f32 {v(tmp)}, {v(tmp)}
    v_cndmask_b32 {v(acc+12)}, {v(acc+12)}, 0, {sHALF}
    v_mul_f32 {v(tmp)}, {v(tmp)}, {v(vG+t)}""")
    for i in range(8):
        o += I(f"v_mul_f32 {v(acc+2*i)}, {v(acc+2*i)}, {v(tmp)}\nv_mul_f32 {v(acc+2*i+1)}, {v(acc+2*i+1)}, {v(tmp)}")
        o += cvt(dst + i, acc + 2 * i, 1)
    return o

def wo_loads(br):
    srd, base = (sWOA, WOA) if br == 0 else (sWOB, WOB)
    out = []
    for i in range(7):
        out.append(I(f"s_add_u32 m0, {sM2}, {base + i*8192}\ns_mov_b32 {sWOO}, {i*64*896}") +
                   I(f"buffer_load_dwordx4 {v(vWOA)}, {srd}, {sWOO} offen lds\nbuffer_load_dwordx4 {v(vWOA+1)}, {srd}, {sWOO} offen offset:1024 lds", tag='wo'))
    return out

def pathB():
    o = I("L_pathB:")
    o += I(f"""v_lshlrev_b32 v24, 2, v23
    v_sub_u32 v24, v22, v24
    v_mov_b32 v25, {H(f2u(-BIG))}""")
    for r in range(16):
        b = (r & 3) + 8 * (r >> 2)
        o += I(f"""v_cmp_le_i32 vcc, {b}, v24
        v_cndmask_b32 {v(MD+r)}, v25, 0, vcc
        v_cndmask_b32 {v(MF+r)}, 0, v25, vcc""".replace('v_cndmask_b32', 'v_cndmask_b32_e64'))
    o += I(f"""
    v_mov_b32 {v(vC)}, {H(f2u(CB))}
    s_lshl_b32 {sT0}, {sRB}, 1
    s_add_u32 {sT0}, {sT0}, {sTH}
    s_lshl_b32 {sT1}, {sH}, 17
    s_lshl_b32 {sT2}, {sT0}, 12
    s_add_u32 {sT2}, {sT2}, {sT1}
    s_add_u32 {sT2}, {sT2}, {H(WS_K)}
    v_add_u32 {v(vKST)}, {sT2}, {v(vL16)}
    s_lshl_b32 {sT2}, {sH}, 7
    s_lshl_b32 {sT3}, {sT0}, 2
    s_add_u32 {sT3}, {sT3}, {sT2}
    s_add_u32 {sT3}, {sT3}, {WS_FK}
    v_mov_b32 {v(vFST)}, {sT3}
    s_add_u32 {sT0}, {sRB}, {sTH}
    s_cmp_lt_u32 {sT0}, 2
    s_cselect_b32 {sINV}, 1, 0
    s_sub_u32 {sT0}, {sT0}, 2
    s_lshl_b32 {sT3}, {sT0}, 13
    s_add_u32 {sT3}, {sT3}, {sT1}
    s_add_u32 {sT3}, {sT3}, {H(WS_K)}
    v_add_u32 {v(vDMA)}, {sT3}, {v(vL16)}
    s_lshl_b32 {sT3}, {sT0}, 3
    s_add_u32 {sT3}, {sT3}, {sT2}
    s_add_u32 {sT3}, {sT3}, {WS_FK}
    v_and_b32 v24, 1, v0
    v_lshl_add_u32 {v(vPA)}, v24, 2, {sT3}
    s_mul_i32 {sT1}, {sHD}, 24576
    s_lshl_b32 {sT2}, {sTH}, 12
    s_add_u32 {sT2}, {sT2}, {sT1}
    s_add_u32 {sT2}, {sT2}, {VT}
    v_add_u32 {v(vTRR)}, {sT2}, {v(vL16)}
    v_add_u32 {v(vTRW)}, 16384, {v(vTRR)}
    s_lshl_b32 {sT2}, {sTH}, 13
    s_add_u32 s3, {sT2}, {sT1}
    """)
    o += common_tick0()
    KO = KT - VT
    def publish(src, isV):
        so = I(f"s_mov_b32 s99, {H(WS_V - WS_K) if isV else 0}")
        st = [I(f"buffer_store_dwordx4 {v(src+4*q,4)}, {v(vKST)}, {sWS}, s99 offen offset:{q*1024} sc1", tag='stV' if isV else 'stK') for q in range(4)]
        wr = [I(f"ds_write_b128 {v(vTRW)}, {v(src+4*q,4)} offset:{q*1024 + (0 if isV else KO)}", tag='trV' if isV else 'trK') for q in range(4)]
        return [so + st[0]] + st[1:] + wr
    def remote(isV):
        nm = 'V' if isV else 'K'
        base = VT if isV else KT
        r = WAIT('poll') + I(f"s_cmp_eq_u32 {sINV}, 1\ns_cbranch_scc1 L_inv{nm}")
        r += poll_check(nm, 0)
        for hlf in range(2):
            r += I(f"s_add_u32 m0, s3, {base + hlf*4096}\ns_mov_b32 s99, {H((WS_V - WS_K if isV else 0) + hlf*4096)}")
            r += I('\n'.join(f"buffer_load_dwordx4 {v(vDMA)}, {sWS}, s99 offen offset:{q*1024} sc1 lds" for q in range(4)), tag='dma' + nm, cond=True)
        r += I(f"L_invj{nm}:")
        pat = 0 if isV else (f2u(-BIG) & 0xffff0000)
        blk = f"L_inv{nm}:\n    s_add_u32 s99, s3, {base}\n    v_add_u32 v20, s99, {v(vL16)}\n"
        blk += ''.join(f"    v_mov_b32 v{k}, 0\n" for k in (22, 23, 24, 25, 27))
        blk += f"    v_mov_b32 v21, {H(pat)}\n    v_cndmask_b32 v26, 0, v21, {sHALF}\n"
        for q in range(8):
            blk += f"    ds_write_b128 v20, {'v[24:27]' if q & 1 else 'v[22:25]'} offset:{q*1024}\n"
        blk += f"    s_waitcnt lgkmcnt(0)\n    s_branch L_invj{nm}\n"
        spin_blocks.append(blk)
        return r
    pre = {0: xcc_publish(), 2: gate_write(),
           12: WAIT('stK') + flag_store(vFST, 0),
           15: poll_issue() + xcc_issue(),
           17: remote(False) + xcc_check() + I(f"v_add_u32 {v(vPA)}, {WS_FV - WS_FK}, {v(vPA)}\nv_add_u32 {v(vFST)}, {WS_FV - WS_FK}, {v(vFST)}") + pretouch(2),
           19: WAIT('stV') + flag_store(vFST, 0),
           21: poll_issue()}
    fill = {8: cvt(KF, ACC0, 16) + publish(KF, False),
            15: cvt(VF, ACC1, 16) + publish(VF, True)}
    o += phase1(pre, fill)
    o += WAIT('dmaK', 'trK') + I("s_barrier")
    o += I(f"v_add_u32 v29, {KO}, {v(vTRR)}")
    kr = [Ins(f"ds_read_b128 {a(8*u+4*s,4)}, v29 offset:{u*2048+s*1024}") for u in range(10) for s in range(2)]
    qc = []
    for t in range(2):
        qc += cvt(QF + 8 * t, ACC0 + 16 * t, 8)
        qc += I(f"v_cndmask_b32 {v(QF+8*t+6)}, {v(QF+8*t+6)}, 1.0, {sHALF}")
    o += merge(kr[:8], qc[:9])
    o += merge(kr[8:], qc[9:] + gate(0, True, 20) + gate(1, True, 21))
    o += remote(True)
    o += stamp(5)
    def S(t, u, dst, c):
        return [mfma(v(dst,16), a(8*u,4), v(QF+8*t,4), c), mfma(v(dst,16), a(8*u+4,4), v(QF+8*t+4,4), v(dst,16))]
    def mx(src, first, m):
        r = []
        for i in range(8):
            if first and i == 0: r += I(f"v_max_f32 {v(m)}, {v(src)}, {v(src+1)}")
            else: r += I(f"v_max3_f32 {v(m)}, {v(m)}, {v(src+2*i)}, {v(src+2*i+1)}")
        return r
    def mfin(m):
        return I(f"""v_mov_b32 {v(m+1)}, {v(m)}
        v_permlane32_swap_b32 {v(m)}, {v(m+1)}
        v_max_f32 {v(m)}, {v(m)}, {v(m+1)}
        v_mul_f32 {v(vM)}, {H(f2u(-CB))}, {v(m)}""")
    for u in range(11):
        mm = S(0, u, SB + 16 * u, v(MF,16) if u == 0 else (v(MD,16) if u == 8 else '0')) if u < 9 else []
        xx = mx(SB + 16 * (u - 2), u == 2, vM1) if u >= 2 else []
        o += merge(mm, xx)
    o += mfin(vM1)
    o += stamp(6)
    PBUF = [PB, PB + 8, QF]
    def pk(r): return Ins(f"v_pk_fma_f32 {v(r,2)}, {v(r,2)}, {v(vC,2)}, {v(vM,2)} op_sel_hi:[1,0,0]")
    def PV(u_local, n, first):
        p = PBUF[n % 3]
        return [mfma(v(OA,16), a(80+8*u_local,4), v(p,4), '0' if first else v(OA,16)), mfma(v(OA,16), a(80+8*u_local+4,4), v(p+4,4), v(OA,16))]
    def exp_tile(src, nxt, n, mm, extra):
        r = []; p = PBUF[n % 3]
        fd = Feeder(extra); per = max(1, -(-int(fd.left()) // 4))
        for q in range(4):
            if len(mm) == 4: r.append(mm[q])
            elif len(mm) == 2 and q in (0, 2): r.append(mm[q // 2])
            for e in range(4): r += I(f"v_exp_f32 {v(src+4*q+e)}, {v(src+4*q+e)}")
            r += flat(fd.take(per) if q < 3 else fd.rest())
            r += cvt(p + 2 * q, src + 4 * q, 2)
            nq = src + 4 * q + 4 if q < 3 else nxt
            if nq is not None: r += [pk(nq), pk(nq + 2)]
        return r
    vr = [Ins(f"ds_read_b128 {a(80+8*u+4*s,4)}, {v(vTRR)} offset:{u*2048+s*1024}") for u in range(10) for s in range(2)]
    wo = Feeder(wo_loads(0) + wo_loads(1))
    T1 = [MF] + [SB + 16 * k for k in range(7)] + [MD]
    o += [pk(SB), pk(SB + 2)]
    for u in range(9):
        mm = []; ex = []
        if u == 0: mm = S(1, 1, MF, v(MF,16)) + S(1, 9, MD, v(MD,16))
        elif u <= 7: mm = S(1, u + 1, SB + 16 * (u - 1), '0')
        if u == 1: ex += mx(MF, True, vM1 + 2) + mx(MD, False, vM1 + 2)
        elif u >= 2: ex += mx(SB + 16 * (u - 2), False, vM1 + 2)
        if u == 2:
            o += WAIT('dmaV', 'trV') + I("s_barrier") + vr[:4]
            ex = merge(ex, vr[4:12])
        if u == 3: ex = merge(ex, vr[12:])
        if 2 <= u <= 7: mm += PV(u - 2, u - 2, u == 2)
        if u == 8: mm = PV(6, 6, False) + PV(7, 7, False)
        if u >= 1: ex = ex + wo.take(1)
        o += exp_tile(SB + 16 * u, SB + 16 * (u + 1) if u < 8 else None, u, mm, ex)
    o += mfin(vM1 + 2)
    o += stamp(7)
    o += [pk(T1[0]), pk(T1[0] + 2)]
    OF = SB + 16 * 8
    for u in range(9):
        mm = []; ex = []
        n = 9 + u
        if u == 0: mm = PV(8, 8, False)
        if u == 1: ex = finish_o(OA, 0, OF, 20, False) + [o_store(OF, 0, 'o0')]
        if u == 4: ex = [WAIT('o0') + o_flag(0)]
        if 2 <= u <= 7: mm = PV(u - 1, n - 2, u == 2)
        if u == 8: mm = PV(7, n - 2, False) + PV(8, n - 1, False)
        ex = ex + wo.take(1)
        o += exp_tile(T1[u], T1[u + 1] if u < 8 else None, n, mm, ex)
    assert wo.left() == 0
    o += PV(9, 17, False)
    o += finish_o(OA, 1, OF + 8, 20, False) + o_store(OF + 8, 1, 'o1')
    o += stamp(8)
    o += I("s_waitcnt vmcnt(0)") + o_flag(4096)
    return o

AWP, AID = 32, 40
APK = 80
AEP, AEN = 208, 224
def phi(P, EP, EN, outP, outN, tmp, packed, rnd):
    o = []
    L, PADB = vC, vM
    if rnd:
        for i in range(8):
            o += I(f"""v_cvt_pk_bf16_f32 {v(P+2*i+1)}, {v(P+2*i)}, {v(P+2*i+1)}
            v_lshlrev_b32 {v(P+2*i)}, 16, {v(P+2*i+1)}
            v_and_b32 {v(P+2*i+1)}, 0xffff0000, {v(P+2*i+1)}""")
    A, B, C, D, C2, D2 = tmp, tmp + 1, tmp + 2, tmp + 4, tmp + 6, tmp + 8
    for i in range(8):
        if i == 0:
            o += I(f"v_max_f32 {v(A)}, {v(P)}, {v(P+1)}\nv_max_f32_e64 {v(B)}, -{v(P)}, -{v(P+1)}")
        else:
            o += I(f"v_max3_f32 {v(A)}, {v(A)}, {v(P+2*i)}, {v(P+2*i+1)}\nv_max3_f32 {v(B)}, {v(B)}, -{v(P+2*i)}, -{v(P+2*i+1)}")
    o += I(f"""v_permlane32_swap_b32 {v(A)}, {v(B)}
    v_max_f32 {v(A)}, {v(A)}, {v(B)}
    v_mul_f32 {v(C)}, {H(f2u(-LOG2E))}, {v(A)}
    v_mul_f32 {v(D)}, {H(f2u(-LOG2E))}, {v(A)}
    v_permlane32_swap_b32 {v(C)}, {v(D)}
    v_add_f32 {v(C2)}, {v(C)}, {v(PADB)}
    v_add_f32 {v(D2)}, {v(D)}, {v(PADB)}""")
    for i in range(8):
        c, d = (C2, D2) if i >= 6 else (C, D)
        if packed:
            o += I(f"""v_pk_fma_f32 {v(EP+2*i,2)}, {v(P+2*i,2)}, {v(L,2)}, {v(c,2)} op_sel_hi:[1,0,0]
            v_pk_fma_f32 {v(EN+2*i,2)}, {v(P+2*i,2)}, {v(L,2)}, {v(d,2)} op_sel_hi:[1,0,0] neg_lo:[1,0,0] neg_hi:[1,0,0]""")
        else:
            for e in range(2):
                o += I(f"v_fma_f32 {v(EP+2*i+e)}, {v(P+2*i+e)}, {v(L)}, {v(c)}\nv_fma_f32 {v(EN+2*i+e)}, -{v(P+2*i+e)}, {v(L)}, {v(d)}")
        for e in range(2):
            o += I(f"v_exp_f32 {v(EP+2*i+e)}, {v(EP+2*i+e)}\nv_exp_f32 {v(EN+2*i+e)}, {v(EN+2*i+e)}")
    if packed:
        for i in range(1, 8):
            for E, s in ((EP, P), (EN, P + 2)):
                o += I(f"v_pk_add_f32 {v(s,2)}, {v(E,2) if i == 1 else v(s,2)}, {v(E+2*i,2)}")
        o += I(f"v_add_f32 {v(A)}, {v(P)}, {v(P+1)}\nv_add_f32 {v(B)}, {v(P+2)}, {v(P+3)}")
    else:
        for i in range(1, 16):
            for E, s in ((EP, A), (EN, B)):
                o += I(f"v_add_f32 {v(s)}, {v(E) if i == 1 else v(s)}, {v(E+i)}")
    o += I(f"""v_permlane32_swap_b32 {v(A)}, {v(B)}
    v_add_f32 {v(A)}, {v(A)}, {v(B)}
    v_rcp_f32 {v(C)}, {v(A)}
    v_mov_b32 {v(D)}, {v(C)}
    v_permlane32_swap_b32 {v(C)}, {v(D)}""")
    for i in range(8):
        for E, r, out in ((EP, C, outP), (EN, D, outN)):
            if packed:
                o += I(f"v_pk_mul_f32 {v(E+2*i,2)}, {v(E+2*i,2)}, {v(r,2)} op_sel_hi:[1,0]")
            else:
                o += I(f"v_mul_f32 {v(E+2*i)}, {v(E+2*i)}, {v(r)}\nv_mul_f32 {v(E+2*i+1)}, {v(E+2*i+1)}, {v(r)}")
            o += cvt(out + i, E + 2 * i, 1)
    return o

def pathA():
    o = []
    o += I(f"""
    v_mov_b32 {v(vC)}, {H(f2u(LOG2E))}
    v_mov_b32 v27, {H(f2u(-BIG))}
    v_cndmask_b32 {v(vM)}, 0, v27, {sHALF}
    v_min_u32 v27, 6, v26
    v_lshl_add_u32 v28, v23, 2, v25
    v_mul_u32_u24 v28, 56, v28
    v_lshl_add_u32 v27, v27, 3, v28
    s_mul_i32 {sT0}, {sHD}, 1568
    s_add_u32 {sT0}, {sT0}, {XR}
    v_add_u32 v69, {sT0}, v27
    v_lshlrev_b32 v24, 2, v23
    v_sub_u32 v24, v22, v24
    v_mov_b32 v27, 0x3f80
    v_mov_b32 v28, 0x3f800000
    """)
    for s in range(2):
        for d in range(4):
            f0 = 16 * s + (2 * d & 3) + 8 * (d >> 1)
            r = AID + 4 * s + d
            o += I(f"""v_cmp_eq_u32 vcc, {f0}, v24
            v_cmp_eq_u32 {sTM}, {f0+1}, v24
            v_cndmask_b32_e64 {v(r)}, 0, v27, vcc
            v_cndmask_b32_e64 {v(r)}, {v(r)}, v28, {sTM}""")
    o += I(f"""
    s_lshl_b32 {sT0}, {sH}, 1
    s_add_u32 {sT0}, {sT0}, {sTH}
    s_lshl_b32 {sT1}, {sT0}, 15
    s_add_u32 {sT1}, {sT1}, {H(WS_KP)}
    v_add_u32 {v(vDMA)}, {sT1}, {v(vL16)}
    s_lshl_b32 {sT2}, {sRB}, 11
    v_add_u32 {v(vKST)}, {sT2}, {v(vDMA)}
    s_lshl_b32 {sT1}, {sT0}, 7
    s_add_u32 {sT1}, {sT1}, {WS_FP}
    v_and_b32 v24, 15, v0
    v_lshl_add_u32 {v(vPA)}, v24, 2, {sT1}
    s_lshl_b32 {sT2}, {sRB}, 2
    s_add_u32 {sT1}, {sT1}, {sT2}
    v_mov_b32 {v(vFST)}, {sT1}
    s_add_u32 {sT0}, {sM4}, {G2}
    v_add_u32 {v(vTRW)}, {sT0}, {v(vL16)}
    v_xor_b32 {v(vTRR)}, 0x2000, {v(vTRW)}
    s_cmp_eq_u32 {sTH}, 1
    s_cselect_b64 s[100:101], -1, 0
    s_mov_b32 {sINV}, s100
    """)
    o += common_tick0()
    wp = WAIT('phi')
    wpr = [Ins(f"ds_read_b64_tr_b16 {v(AWP+4*s+2*jj,2)}, v69 offset:{(16*s+8*jj)*56}") for s in range(2) for jj in range(2)]
    KFa = 240
    PH = 144
    def proj(src, t): return [mfma(v(APK+16*t,16), v(AWP,4), v(src+8*t,4), '0'), mfma(v(APK+16*t,16), v(AWP+4,4), v(src+8*t+4,4), v(APK+16*t,16))]
    ks = cvt(KFa, ACC0, 16) + proj(KFa, 0) + proj(KFa, 1)
    for t in range(2):
        ks += phi(APK + 16 * t, AEP, AEN, PH + 16 * t, PH + 16 * t + 8, vT, False, cfg.round_pk)
        if t == 1:
            pass
        tr = []
        for sg, E in ((0, AEP), (1, AEN)):
            p = PH + 16 * t + 8 * sg
            tr += [mfma(v(E,16), v(p,4), v(AID,4), '0'), mfma(v(E,16), v(p+4,4), v(AID+4,4), v(E,16))]
        ks += tr + cvt(APK + 16 * t, AEP, 8) + cvt(APK + 16 * t + 8, AEN, 8)
    fd = Feeder(ks); per = fd.left() / 7.0
    fill = {}
    for g in range(8, 15): fill[g] = fd.take(per) if g < 14 else fd.rest()
    VFa = 240
    kv = cvt(VFa, ACC1, 16)
    for sg, E in ((0, AEP), (1, AEN)):
        for t in range(2):
            for s in range(2):
                kv.append(mfma(v(E,16), v(APK+16*t+8*sg+4*s,4), v(VFa+8*t+4*s,4), '0' if (t == 0 and s == 0) else v(E,16)))
    fill[15] = kv
    sel = I(f"s_mov_b32 s100, {sINV}\ns_mov_b32 s101, {sINV}")
    for i in range(16):
        sel += I(f"v_cndmask_b32_e64 {v(APK+16+i)}, {v(AEN+i)}, {v(AEP+i)}, s[100:101]")
        if i % 4 == 3: sel += I(f"ds_write_b128 {v(vTRW)}, {v(APK+16+i-3,4)} offset:{(i//4)*1024}", tag='B17')
    for i in range(16): sel += I(f"v_cndmask_b32_e64 {v(APK+i)}, {v(AEP+i)}, {v(AEN+i)}, s[100:101]")
    fill[16] = sel
    cmb = [Ins(f"ds_read_b128 {v(AEP+4*q,4)}, {v(vTRR)} offset:{q*1024}") for q in range(4)]
    cmb2 = []
    for i in range(16): cmb2 += I(f"v_add_f32 {v(APK+i)}, {v(APK+i)}, {v(AEP+i)}")
    cmb2 += cvt(AEN, APK, 8)
    cmb2 += I(f"buffer_store_dwordx4 {v(AEN,4)}, {v(vKST)}, {sWS}, 0 offen sc1\nbuffer_store_dwordx4 {v(AEN+4,4)}, {v(vKST)}, {sWS}, 0 offen offset:1024 sc1", tag='stP')
    fill[17] = cmb2
    wob = wo_loads(1)
    fill[19] = wob[:2]; fill[20] = wob[2:4]; fill[21] = wob[4:]
    pre = {0: xcc_publish(), 2: gate_write(), 3: wpr, 15: xcc_issue(), 17: cmb, 18: xcc_check() + pretouch(1),
           20: WAIT('stP') + flag_store(vFST, 0)}
    pre[1] = wp
    o += phase1(pre, fill)
    QFa = 240
    PQP = 112
    o += I("s_barrier")
    qs = []
    for t in range(2):
        qs += cvt(QFa + 8 * t, ACC0 + 16 * t, 8) + I(f"v_cndmask_b32 {v(QFa+8*t+6)}, {v(QFa+8*t+6)}, 0, {sHALF}")
        qs += proj(QFa, t)
    qs += gate(0, False, 20) + gate(1, False, 21)
    o += qs
    p0 = phi(APK, AEP, AEN, PQP, PQP + 8, vT, True, cfg.round_pq)
    o += p0[:len(p0) // 2] + poll_issue() + p0[len(p0) // 2:]
    o += poll_check('P')
    o += stamp(5)
    pl = []
    for k in range(16):
        g = I(f"s_lshl_b32 s99, {sR}, 14\ns_xor_b32 s99, s99, {k*2048}") if k % 2 == 0 else []
        for s in range(2):
            pl.append(g + I(f"buffer_load_dwordx4 {a(8*k+4*s,4)}, {v(vDMA)}, {sWS}, s99 offen offset:{(k%2)*2048+s*1024} sc1")); g = []
    o += flat(pl[:12])
    p1 = phi(APK + 16, AEP, AEN, PQP + 16, PQP + 24, vT, True, cfg.round_pq)
    o += merge(p1, pl[12:20])
    o += stamp(6)
    KS = 144
    sm = [mfma(v(KS,16), v(AID+4*s,4), a(8*k+4*s,4), '0' if (k == 0 and s == 0) else v(KS,16)) for k in range(16) for s in range(2)]
    o += merge(sm[:12], pl[20:])
    o += flat(wo_loads(0))
    o += sm[12:]
    KVO, KVX = 176, 184
    o += cvt(KVO, KS, 8)
    o += I(f"v_subrev_u32 {v(vTRW)}, {G2-G3}, {v(vTRW)}\nv_subrev_u32 {v(vTRR)}, {G2-G3}, {v(vTRR)}")
    o += I(f"ds_write_b128 {v(vTRW)}, {v(KVO,4)}\nds_write_b128 {v(vTRW)}, {v(KVO+4,4)} offset:1024", tag='kx')
    o += WAIT('kx') + I("s_barrier")
    o += I(f"ds_read_b128 {v(KVX,4)}, {v(vTRR)}\nds_read_b128 {v(KVX+4,4)}, {v(vTRR)} offset:1024")
    o += stamp(7)
    KP_, KN_ = 192, 200
    o += I(f"s_mov_b32 s100, {sINV}\ns_mov_b32 s101, {sINV}")
    for i in range(8):
        o += I(f"v_cndmask_b32_e64 {v(KP_+i)}, {v(KVO+i)}, {v(KVX+i)}, s[100:101]\nv_cndmask_b32_e64 {v(KN_+i)}, {v(KVX+i)}, {v(KVO+i)}, s[100:101]")
    for t in range(2):
        d = v(APK + 16 * t, 16)
        o += [mfma(d, v(KP_,4), v(PQP+16*t,4), '0'), mfma(d, v(KP_+4,4), v(PQP+16*t+4,4), d),
              mfma(d, v(KN_,4), v(PQP+16*t+8,4), d), mfma(d, v(KN_+4,4), v(PQP+16*t+12,4), d)]
    for t in range(2):
        o += finish_o(APK + 16 * t, t, AEP + 8 * t, 20, True) + o_store(AEP + 8 * t, t, 'o%d' % t)
    o += stamp(8)
    o += I("s_waitcnt vmcnt(0)") + o_flag(0)
    o += I("s_branch L_phase3")
    return o

def phase3():
    o = I(f"""L_phase3:
    s_cmp_ge_u32 {sJ}, 28
    s_cbranch_scc1 L_tail
    s_mul_i32 {sT0}, {sJ}, 37
    s_lshr_b32 {sT0}, {sT0}, 8
    s_mul_i32 {sT1}, {sT0}, 7
    s_sub_u32 s73, {sJ}, {sT1}
    s_lshl_b32 {sT1}, {sXCD}, 2
    s_add_u32 s74, {sT1}, {sT0}
    """)
    o += I(f"""
    s_xor_b32 s75, {sTH}, 1
    s_lshl_b32 s76, {sTH}, 1
    s_lshl_b32 {sT0}, s74, 7
    s_lshl_b32 {sT1}, {sHD}, 5
    s_add_u32 {sT0}, {sT0}, {sT1}
    s_add_u32 {sT0}, {sT0}, {WS_FO}
    s_lshl_b32 {sT1}, s75, 12
    s_add_u32 {sT1}, {sT1}, {sT0}
    v_and_b32 v20, 7, v0
    v_lshl_add_u32 {v(vPA)}, v20, 2, {sT1}
    """)
    o += poll_issue()
    o += I(f"""
    s_lshl_b32 {sT1}, s76, 12
    s_add_u32 {sT1}, {sT1}, {sT0}
    v_lshl_add_u32 v16, v20, 2, {sT1}
    s_lshl_b32 {sT0}, s74, 16
    s_lshl_b32 {sT1}, {sTH}, 15
    s_add_u32 {sT0}, {sT0}, {sT1}
    s_lshl_b32 {sT1}, {sHD}, 14
    s_add_u32 {sT0}, {sT0}, {sT1}
    s_add_u32 {sT0}, {sT0}, {H(WS_O)}
    s_lshl_b32 s77, s75, 21
    s_add_u32 s77, s77, {sT0}
    s_lshl_b32 s78, {sTH}, 21
    s_add_u32 s78, s78, {sT0}
    v_and_b32 v21, 63, v0
    v_lshrrev_b32 v23, 5, v21
    v_bfe_u32 v25, v21, 2, 2
    v_bfe_u32 v26, v21, 4, 1
    v_and_b32 v27, 3, v21
    v_lshl_add_u32 v26, v26, 2, v27
    v_lshrrev_b32 v27, 1, v25
    v_lshlrev_b32 v27, 6, v27
    v_lshl_add_u32 v27, v26, 3, v27
    v_lshl_add_u32 v28, v25, 7, v27
    s_mul_i32 {sT0}, {sHD}, {8*28*128}
    s_mul_i32 {sT1}, s75, {WOB}
    s_add_u32 {sT1}, {sT1}, {sT0}
    v_add_u32 v34, {sT1}, v28
    v_lshl_add_u32 v32, v23, 9, v34
    v_xor_b32 v33, 64, v32
    v_xor_b32 v35, 64, v34
    s_mul_i32 {sT1}, {sTH}, {WOB}
    s_add_u32 {sT1}, {sT1}, {sT0}
    v_add_u32 v38, {sT1}, v28
    v_lshl_add_u32 v36, v23, 9, v38
    v_xor_b32 v37, 64, v36
    v_xor_b32 v39, 64, v38
    s_barrier
    """)
    def oloads(part, sreg):
        r = []
        for k in range(4):
            g = I(f"s_add_u32 s99, {sreg}, {k*4096}")
            for q in range(4):
                r.append(g + I(f"buffer_load_dwordx4 {a(64*part+16*k+4*q,4)}, {v(vL16)}, {sWS}, s99 offen offset:{q*1024} sc1")); g = []
        return r
    WB = 48
    AC = 128
    def worb(part, i):
        r = []; b = WB + 16 * ((8 * part + i) % 4)
        for s in range(2):
            for ct in range(2):
                for jj in range(2):
                    ar = 32 + 4 * part + ct + (2 if (s == 1 and jj == 1) else 0)
                    r += I(f"ds_read_b64_tr_b16 {v(b+8*s+4*ct+2*jj,2)}, {v(ar)} offset:{i*3584+s*2048+jj*1024}")
        return r
    def womm(part, i):
        r = []; b = WB + 16 * ((8 * part + i) % 4)
        for s in range(2):
            for ct in range(2):
                d = v(AC + 16 * ct, 16)
                r.append(mfma(d, v(b+8*s+4*ct,4), a(64*part+8*i+4*s,4), '0' if (part == 0 and i == 0 and s == 0) else d))
        return r
    o += worb(0, 0)
    o += poll_check('O1')
    o += flat(oloads(0, 's77'))
    o += I(f"v_mov_b32 {v(vPA)}, v16") + poll_issue()
    o += stamp(9)
    seq = [(p, i) for p in range(2) for i in range(8)]
    for n, (p, i) in enumerate(seq):
        nxt = worb(*seq[n + 1]) if n + 1 < 16 else []
        if n == 7:
            o += poll_check('O2') + flat(oloads(1, 's78')) + stamp(10)
        o += merge(womm(p, i), nxt)
    o += I(f"""
    s_cmp_eq_u32 {sHD}, 1
    s_cselect_b64 s[100:101], -1, 0
    s_add_u32 {sT0}, {sM4}, {G3}
    v_add_u32 v40, {sT0}, {v(vL16)}
    v_xor_b32 v41, 0x1000, v40
    s_lshl_b32 {sT0}, s74, 6
    s_lshl_b32 {sT1}, {sTH}, 5
    s_add_u32 {sT0}, {sT0}, {sT1}
    s_mul_i32 {sT0}, {sT0}, 896
    s_lshl_b32 {sT1}, s73, 7
    s_add_u32 {sT0}, {sT0}, {sT1}
    s_lshl_b32 {sT1}, {sHD}, 6
    s_add_u32 {sT0}, {sT0}, {sT1}
    v_and_b32 v22, 31, v0
    v_mul_u32_u24 v22, 896, v22
    v_lshl_add_u32 v22, v23, 4, v22
    v_add_u32 v42, {sT0}, v22
    """)
    for i in range(16):
        o += I(f"v_cndmask_b32_e64 {v(48+i)}, {v(AC+16+i)}, {v(AC+i)}, s[100:101]")
        if i % 4 == 3: o += I(f"ds_write_b128 v40, {v(48+i-3,4)} offset:{(i//4)*1024}", tag='cx')
    for i in range(16): o += I(f"v_cndmask_b32_e64 {v(64+i)}, {v(AC+i)}, {v(AC+16+i)}, s[100:101]")
    o += WAIT('cx') + I("s_barrier")
    o += [Ins(f"ds_read_b128 {v(80+4*q,4)}, v41 offset:{q*1024}") for q in range(4)]
    for u in range(2):
        for i in range(4): o += I(f"v_pk_add_f32 {v(64+8*u+2*i,2)}, {v(64+8*u+2*i,2)}, {v(80+8*u+2*i,2)}")
        if cfg.perturb:
            kind, val = cfg.perturb
            if kind == 'all':
                for i in range(8): o += I(f"v_add_f32 {v(64+8*u+i)}, {H(f2u(val))}, {v(64+8*u+i)}")
            elif kind == 'mul':
                for i in range(8): o += I(f"v_mul_f32 {v(64+8*u+i)}, {H(f2u(val))}, {v(64+8*u+i)}")
            elif u == 0:
                o += I(f"v_cmp_eq_u32 vcc, 0, v42\nv_mov_b32 v20, {H(f2u(val))}\nv_cndmask_b32_e64 v20, 0, v20, vcc\nv_add_f32 v64, v20, v64")
        o += cvt(96 + 4 * u, 64 + 8 * u, 4)
        o += I(f"""v_permlane32_swap_b32 {v(96+4*u)}, {v(96+4*u+2)}
        v_permlane32_swap_b32 {v(96+4*u+1)}, {v(96+4*u+3)}
        buffer_store_dwordx4 {v(96+4*u,4)}, v42, {sOUT}, 0 offen offset:{32*u}""")
    o += stamp(11)
    return o

def tail():
    t = f"""L_tail:
    s_cmp_lg_u32 s2, 255
    s_cbranch_scc1 L_fin
    s_cmp_lg_u32 {sWV}, 0
    s_cbranch_scc1 L_fin
    v_add_u32 v20, {WS_XCC}, {v(vL16)}
    s_lshl_b32 {sT0}, {sNONCE}, 4
    s_mov_b32 {sSPIN}, 0
L_tail_l:
    buffer_load_dwordx4 v[24:27], v20, {sWS}, 0 offen sc1
    s_add_u32 {sSPIN}, {sSPIN}, 1
    s_waitcnt vmcnt(0)
    v_xor_b32 v24, {sT0}, v24
    v_xor_b32 v25, {sT0}, v25
    v_xor_b32 v26, {sT0}, v26
    v_xor_b32 v27, {sT0}, v27
    v_or3_b32 v24, v24, v25, v26
    v_or_b32 v24, v24, v27
    v_cmp_lt_u32 vcc, 15, v24
    s_cmp_gt_u32 {sSPIN}, {SPIN}
    s_cbranch_scc1 L_tail_go
    s_cbranch_vccnz L_tail_l
L_tail_go:
    v_mov_b32 v20, {WS_E}
    s_mov_b64 exec, 1
    buffer_store_dword {v(vNON)}, v20, {sWS}, 0 offen sc1
    s_mov_b64 exec, -1
L_fin:
"""
    if cfg.stamps:
        t += f"""    s_memrealtime s[98:99]
    s_waitcnt lgkmcnt(0)
    v_writelane_b32 v31, s98, 31
    v_writelane_b32 v31, {sMODE}, 29
    s_lshl_b32 {sT0}, s2, 2
    s_add_u32 {sT0}, {sT0}, {sWV}
    s_lshl_b32 {sT0}, {sT0}, 8
    s_add_u32 {sT0}, {sT0}, {H(WS_STAMP)}
    v_lshrrev_b32 v20, 2, {v(vL16)}
    v_add_u32 v20, {sT0}, v20
    buffer_store_dword v31, v20, {sWS}, 0 offen
"""
    t += "L_end:\n    s_endpgm\n"
    return t

def build(code_len):
    spin_blocks.clear(); mode_n[0] = 0
    stats = {}
    st = State()
    pro = finalize(prologue(code_len), st, stats)
    sa = st.fork(); sb = st.fork()
    A = finalize(pathA(), sa, stats)
    B = finalize(pathB(), sb, stats)
    s3 = State(); s3.hist = list(sb.hist)
    for s in (sa, sb):
        assert all(o.kind == 'vst' for o in s.vm) and not s.lg, (s.vm, s.lg)
    P3 = finalize(phase3(), s3, stats)
    body = text(pro) + text(A) + text(B) + text(P3) + "    s_branch L_fin\n" + ''.join(spin_blocks) + tail()
    hdr = open('cdna_kernels/%s.s.ref' % NAME).read().split('; Override launch')[0]
    src = hdr + f"""; Generated by work/gen.py (hand-written generator; no compiler output).
; @launch grid=(256,1,1) block=(256,1,1) lds={LDS_BYTES}
.amdgcn_target "amdgcn-amd-amdhsa--gfx950"
.text
.globl {NAME}_kernel
.p2align 8
.type {NAME}_kernel,@function
{NAME}_kernel:
{body}L_code_end:
.section .rodata,"a"
.p2align 6
.amdhsa_kernel {NAME}_kernel
  .amdhsa_next_free_vgpr 512
  .amdhsa_next_free_sgpr 102
  .amdhsa_accum_offset 256
  .amdhsa_group_segment_fixed_size 0
  .amdhsa_kernarg_size 88
  .amdhsa_user_sgpr_count 2
  .amdhsa_user_sgpr_kernarg_segment_ptr 1
  .amdhsa_system_sgpr_workgroup_id_x 1
.end_amdhsa_kernel
"""
    info = dict(stats, pro=cost(pro), A=cost(A), B=cost(B), P3=cost(P3))
    return src, info

def code_size(src):
    import subprocess, os, tempfile
    d = tempfile.mkdtemp()
    open(d + '/k.s', 'w').write(src)
    r = subprocess.run(['clang', '-x', 'assembler', '-target', 'amdgcn-amd-amdhsa', '-mcpu=gfx950', '-c', d + '/k.s', '-o', d + '/k.o'], capture_output=True, text=True)
    if r.returncode: raise RuntimeError(r.stderr[:3000])
    r = subprocess.run(['llvm-objdump', '-h', d + '/k.o'], capture_output=True, text=True)
    for l in r.stdout.split('\n'):
        p = l.split()
        if len(p) > 2 and p[1] == '.text': return int(p[2], 16)

def generate(**kw):
    for k, val in kw.items(): setattr(cfg, k, val)
    src, _ = build(0x4000)
    n = code_size(src)
    src, info = build(n)
    assert code_size(src) == n and n <= 32768, n
    info['bytes'] = n
    return src, info

if __name__ == '__main__':
    out = sys.argv[1] if len(sys.argv) > 1 else 'cdna_kernels/%s.s' % NAME
    kw = {}
    for x in sys.argv[2:]:
        k, val = x.split('='); kw[k] = eval(val)
    src, info = generate(**kw)
    open(out, 'w').write(src)
    print(out, info)
```

```python
import re, copy

REG_RE = re.compile(r'^(-|\|)?(abs\()?([vas])(\d+|\[(\d+):(\d+)\])\)?\|?$')
TRANS = ('v_exp_f32', 'v_log_f32', 'v_rcp_f32', 'v_rsq_f32', 'v_sqrt_f32', 'v_sin_f32', 'v_cos_f32', 'v_rcp_iflag_f32')


def regs_of(tok):
    tok = tok.strip()
    if tok == 'vcc': return [('s', 106), ('s', 107)]
    if tok == 'exec': return [('s', 126), ('s', 127)]
    if tok == 'm0': return [('s', 124)]
    m = REG_RE.match(tok)
    if not m: return []
    k = m.group(3)
    if m.group(5) is not None:
        return [(k, i) for i in range(int(m.group(5)), int(m.group(6)) + 1)]
    return [(k, int(m.group(4)))]


class Ins:
    __slots__ = ('text', 'op', 'kind', 'rd', 'wr', 'tag', 'cond', 'cfrag', 'passes', 'wide', 'cost', 'ab')

    def __init__(self, text, tag=None, cond=False):
        self.text = text; self.tag = tag; self.cond = cond
        self.cfrag = []; self.passes = 0; self.wide = []; self.ab = []
        t = text.split(';')[0].strip()
        if t.endswith(':') or t.startswith('.') or t == '':
            self.op = ''; self.kind = 'label'; self.rd = []; self.wr = []; self.cost = 0; return
        parts = t.split(None, 1)
        op = parts[0]; self.op = op
        rest = parts[1] if len(parts) > 1 else ''
        ops = [o.strip() for o in rest.split(',')] if rest else []
        mods = ''
        if ops:
            last = ops[-1].split(None, 1)
            for i, o in enumerate(ops):
                sp = o.split(None, 1)
                if len(sp) > 1:
                    mods = ' '.join([sp[1]] + ops[i + 1:]); ops = ops[:i] + [sp[0]]; break
        R = [regs_of(o) for o in ops]
        flat = lambda l: [x for y in l for x in y]
        rd, wr = [], []
        self.cost = 1
        if op == 'WAIT':
            self.kind = 'wait'; self.cost = 0
        elif op.startswith('v_mfma'):
            self.kind = 'mfma'; wr = R[0]; rd = flat(R[1:]); self.cfrag = R[3]; self.ab = R[1] + R[2]
            self.passes = 8 if '32x32' in op else 4; self.cost = 2
        elif op.startswith('buffer_') or op.startswith('global_'):
            if 'store' in op or ('atomic' in op and 'sc0' not in mods.split()):
                self.kind = 'vst'; rd = flat(R)
                if 'x4' in op or 'x3' in op: self.wide = R[0] if op.startswith('buffer_') else R[1]
            elif 'lds' in mods.split() or '_lds_' in op:
                self.kind = 'dma'; rd = flat(R) + [('s', 124)]
            elif op in ('buffer_inv', 'buffer_wbl2'):
                self.kind = 'vst'
            else:
                self.kind = 'vld'; wr = R[0]; rd = flat(R[1:])
                if 'd16' in op: rd = rd + R[0]
        elif op.startswith('ds_'):
            if op.startswith('ds_write'):
                self.kind = 'dsw'; rd = flat(R)
            else:
                self.kind = 'dsr'; wr = R[0]; rd = flat(R[1:])
        elif op.startswith('s_atomic'):
            self.kind = 'smem'; rd = flat(R)
        elif op.startswith('s_load') or op in ('s_memtime', 's_memrealtime'):
            self.kind = 'smem'; wr = R[0]; rd = flat(R[1:])
        elif op in ('s_waitcnt', 's_barrier', 's_nop', 's_endpgm', 's_setprio', 's_sleep') or op.startswith('s_cbranch') or op == 's_branch':
            self.kind = 'ctl'
            if 'vcc' in op: rd = regs_of('vcc')
            if op == 's_nop': self.cost = int(ops[0], 0) + 1
        elif op.startswith('s_cmp') or op.startswith('s_bitcmp'):
            self.kind = 'salu'; rd = flat(R)
        elif op.startswith('s_'):
            self.kind = 'salu'; wr = R[0]; rd = flat(R[1:])
            if op in ('s_addk_i32', 's_mulk_i32', 's_cmov_b32', 's_cmov_b64'): rd = rd + R[0]
        elif op.startswith('v_'):
            self.kind = 'valu'
            base = op.replace('_e32', '').replace('_e64', '')
            if base.startswith('v_permlane') and 'swap' in base:
                wr = R[0] + R[1]; rd = R[0] + R[1]; self.cost = 2
            elif base in ('v_add_co_u32', 'v_addc_co_u32', 'v_sub_co_u32'):
                wr = R[0] + R[1]; rd = flat(R[2:])
            else:
                wr = R[0]; rd = flat(R[1:])
                if base.startswith('v_fmac') or base == 'v_writelane_b32': rd = rd + R[0]
            if base in TRANS: self.cost = 2
        else:
            raise ValueError('unknown op ' + text)
        self.rd = rd; self.wr = wr

    def is_trans(self): return self.op.replace('_e32', '').replace('_e64', '') in TRANS
    def __repr__(self): return self.text


def I(text, **kw):
    return [Ins(l.strip(), **kw) for l in text.strip().split('\n') if l.strip() and not l.strip().startswith(';')]


def WAIT(*tags):
    w = Ins('WAIT'); w.tag = set(tags); return [w]


class State:
    def __init__(self):
        self.vm = []
        self.lg = []
        self.hist = []

    def fork(self):
        s = State(); s.vm = list(self.vm); s.lg = list(self.lg); s.hist = list(self.hist); return s


def _need(q, pred):
    for i in range(len(q) - 1, -1, -1):
        if pred(q[i]): return i
    return -1


def _states_needed(ins, hist):
    need = 0; dist = 0
    rd = set(ins.rd); wr = set(ins.wr)
    vrd = {r for r in rd if r[0] != 's'}; srd = {r for r in rd if r[0] == 's'}
    isvm = ins.kind in ('vld', 'vst', 'dma'); isds = ins.kind in ('dsr', 'dsw')
    base = ins.op.replace('_e32', '').replace('_e64', '')
    for p in reversed(hist):
        if dist >= 20: break
        req = 0
        pw = set(p.wr)
        if p.kind == 'valu':
            pv = {r for r in pw if r[0] != 's'}; ps = {r for r in pw if r[0] == 's'}
            if ins.kind == 'mfma' and pv & vrd: req = max(req, 2)
            if ins.kind == 'valu' and (base.startswith('v_permlane') or 'dpp' in ins.text or 'row_' in ins.text) and pv & vrd: req = max(req, 2)
            if base in ('v_readfirstlane_b32', 'v_readlane_b32') and pv & vrd: req = max(req, 1)
            if p.is_trans() and pv & vrd and (ins.kind != 'valu' or not ins.is_trans() or True): req = max(req, 1)
            if ps & srd:
                if ins.kind == 'valu': req = max(req, 4 if 'lane' in base else 2)
                if isvm: req = max(req, 5)
                if ins.kind in ('salu', 'ctl', 'smem'): req = max(req, 1)
        elif p.kind == 'mfma':
            big = 12 if p.passes == 8 else 8
            if ins.kind == 'mfma':
                if pw & set(ins.ab): req = max(req, big)
                c = set(ins.cfrag)
                if pw & c and not (list(p.wr) == list(ins.cfrag) and p.passes == ins.passes): req = max(req, big - 2)
                if pw & wr and p.passes != ins.passes: req = max(req, big)
            elif ins.kind == 'valu' or isvm or isds:
                if pw & (vrd | wr): req = max(req, big)
                if ins.kind == 'valu' and set(p.cfrag) & wr: req = max(req, 7 if p.passes == 8 else 3)
        elif p.kind == 'vst':
            if p.wide and set(p.wide) & wr: req = max(req, 2)
        elif p.kind == 'salu':
            if ('s', 124) in pw and ins.kind == 'dma': req = max(req, 1)
        if req - dist > need: need = req - dist
        if p.kind != 'label' and not p.cond: dist += (p.cost if p.op == 's_nop' else 1)
    return need


def finalize(path, st, stats=None):
    out = []

    def put(i):
        n = _states_needed(i, st.hist)
        while n > 0:
            k = min(n, 16)
            nop = Ins('s_nop %d' % (k - 1)); out.append(nop); st.hist.append(nop); n -= k
            if stats is not None: stats['nop'] = stats.get('nop', 0) + k
        out.append(i); st.hist.append(i)
        if len(st.hist) > 64: del st.hist[:32]

    for ins in path:
        touched = set(ins.rd) | set(ins.wr)
        if ins.kind == 'wait':
            vi = _need(st.vm, lambda o: o.tag in ins.tag); li = _need(st.lg, lambda o: o.tag in ins.tag)
        elif ins.kind == 'label':
            vi = li = -1
        else:
            vi = _need(st.vm, lambda o: o.kind == 'vld' and touched & set(o.wr) and not (ins.kind == 'vld' and ('d16' in ins.op or not (set(ins.rd) & set(o.wr)))))
            li = _need(st.lg, lambda o: touched & set(o.wr))
        w = []
        if vi >= 0:
            n = sum(1 for o in st.vm[vi + 1:] if not o.cond)
            n = min(n, 62); w.append('vmcnt(%d)' % n); st.vm = st.vm[vi + 1:]
        if li >= 0:
            if any(o.kind == 'smem' for o in st.lg):
                w.append('lgkmcnt(0)'); st.lg = []
            else:
                n = sum(1 for o in st.lg[li + 1:] if not o.cond)
                w.append('lgkmcnt(%d)' % min(n, 14)); st.lg = st.lg[li + 1:]
        if w:
            put(Ins('s_waitcnt ' + ' '.join(w)))
            if stats is not None: stats['wait'] = stats.get('wait', 0) + 1
        if ins.kind == 'wait': continue
        if ins.op == 's_waitcnt':
            m = re.search(r'vmcnt\((\d+)\)', ins.text)
            if m and int(m.group(1)) == 0 and not ins.cond: st.vm = []
            m = re.search(r'lgkmcnt\((\d+)\)', ins.text)
            if m and int(m.group(1)) == 0: st.lg = [o for o in st.lg if not o.cond] if ins.cond else []
        put(ins)
        if ins.kind in ('vld', 'vst', 'dma'): st.vm.append(ins)
        if ins.kind in ('dsr', 'dsw', 'smem'): st.lg.append(ins)
    return out


def cost(l): return sum(i.cost for i in l)


def units(l):
    return [u if isinstance(u, list) else [u] for u in l]


def merge(*streams, span=None):
    span = span or [1] * len(streams)
    span = [sp for s, sp in zip(streams, span) if s]
    ss = [units(s) for s in streams if s]
    tot = [max(1, sum(cost(u) for u in s)) / sp for s, sp in zip(ss, span)]
    pos = [0] * len(ss); done = [0] * len(ss); out = []
    while True:
        best = None
        for k, s in enumerate(ss):
            if pos[k] < len(s):
                f = done[k] / tot[k]
                if best is None or f < best[0] - 1e-12: best = (f, k)
        if best is None: break
        k = best[1]; u = ss[k][pos[k]]; out += u; done[k] += cost(u); pos[k] += 1
    return out


class Feeder:
    def __init__(self, stream): self.u = units(stream); self.p = 0
    def take(self, budget):
        out = []
        while self.p < len(self.u) and budget > 0:
            u = self.u[self.p]; out.append(u); budget -= max(cost(u), 0.01); self.p += 1
        return out
    def rest(self):
        out = self.u[self.p:]; self.p = len(self.u); return out
    def left(self): return sum(cost(u) for u in self.u[self.p:])


def flat(l):
    out = []
    for u in l:
        if isinstance(u, list): out += flat(u)
        else: out.append(u)
    return out


def text(l):
    return '\n'.join((i.text if i.kind == 'label' else '    ' + i.text) for i in l) + '\n'
```

```python
import sys, math, struct
sys.path.insert(0, 'work')
from asmlib import *

NAME = 'gated_mix__linear_kernel_hedgehog__sliding_block__prompt'
def f2u(x): return struct.unpack('<I', struct.pack('<f', x))[0]
def H(x): return '0x%x' % (x & 0xffffffff)

class Cfg:
    stamps = False
    only = None
    map = 'g82'
    planB = {5: [14, 15], 6: [16]}
    n0 = 3
    blockA = (10, 11)
    planA = {7: [12, 13], 8: [15], 9: [16], 10: [17], 11: [18], 12: [19], 13: [20]}
    barsA = {7: 9, 10: 11, 12: 14}
    fracA = 1.0
    pkL = False
    bvE = 4
    wbA = 10
    pollP = 0.6
    flagP = 17
    bqL = 19
    waL = 20
    tk = []
    wopf = 'b2'
    waA1 = 4
    rot3 = False
    swo = 4
    stlb = True
    tlb = False
    kst = 'early'
cfg = Cfg()

WQ, G3, G0, G1, G2, XR = 0, 57344, 81920, 106496, 131072, 155648
GRP = [G2, G0, G1]
WV = G3
KT = G1 + 8192
VT = G3
WOA = WQ
WOB = G1
WOA_A = WV - 8192
PHS = 120
A_VF = KT + 256 * PHS
LDS_BYTES = 163840
B1, B2 = 57344, 114688
WS_E, WS_FP, WS_FK, WS_FV, WS_FO = 0, 0x10000, 0x20000, 0x40000, 0x60000
WS_K, WS_V, WS_KP, WS_O = 0x100000, 0x300000, 0x500000, 0x600000
WS_STAMP = 0xA00000
WS_BYTES = 0xB00000
TS = 28672
OOB = 0x7f000000
SPIN = 100000
sX, sW, sWS, sWOA, sWOB, sOUT, sPHI = ('s[%d:%d]' % (b, b + 3) for b in (28, 32, 36, 40, 44, 48, 52))
sNONCE, sN2 = 's26', 's[26:27]'
sXCD, sJ, sP, sBR, sR, sRB, sWV, sTH, sHD, sH, sROT, sM2, sM1 = ('s%d' % i for i in range(60, 73))
sXO = ['s%d' % i for i in range(73, 80)]
sWO = ['s%d' % i for i in range(80, 87)]
sT0, sT1, sT2, sT3, sT4 = 's87', 's88', 's89', 's98', 's3'
sHALF = 's[90:91]'
sSPIN = 's93'
sTM = 's[94:95]'
sI, sWOO = 's96', 's97'
sEQ, sEK, sEV = 's[8:9]', 's[10:11]', 's[12:13]'
sTG = 's14'
sSL = ['s15', 's16', 's17']
sTRB, sCG, sTB, sACT = 's18', 's19', 's20', 's21'
sO1, sO2 = 's22', 's23'
sWOAB, sSCR = 's24', 's25'
sFB = 's[100:101]'
sF1, sF2, sD1, sD2 = 's0', 's1', 's58', 's59'
def v(i, n=1): return 'v%d' % i if n == 1 else 'v[%d:%d]' % (i, i + n - 1)
vL16, vWOA, vG, vOST, vFO, vNON, vFST, vTRR, vDMA = 1, 2, 4, 5, 6, 7, 8, 10, 11
vT = 12
vJ = 22
vST = 23
QF, PB, OA, RG, SUB, SB = 24, 32, 48, 64, 96, 112
WF, ACC0, ACC1, XF = 64, 96, 48, 144
vXA, vWAa, vWAp, vXR, vWRa, vWRp, vKST = 32, 34, 35, 36, 44, 46, 47

LOG2E = 1.4426950408889634
CB = LOG2E / math.sqrt(28.0)
BIG = 1e30

def stamp(i):
    if not cfg.stamps or (cfg.only is not None and i not in cfg.only): return []
    return I(f"""s_memtime s[6:7]
    s_memrealtime s[4:5]
    s_waitcnt lgkmcnt(0)
    v_writelane_b32 {v(vST)}, s6, {i}
    v_writelane_b32 {v(vST)}, s4, {i+32}""")
def prio(n): return I(f"s_setprio {n}")
def mfma(d, A, B, c): return Ins(f"v_mfma_f32_32x32x16_bf16 {d}, {A}, {B}, {c}")
def sel2(r, off): return (r[1], off - B2) if off >= B2 else (r[0], off - B1)

def chunk(i):
    return I(f"""
    s_add_u32 {sT0}, {sROT}, {i}
    s_sub_u32 {sT1}, {sT0}, 7
    s_min_u32 {sT0}, {sT0}, {sT1}
    s_lshl_b32 {sXO[i]}, {sT0}, 7
    s_mul_i32 {sWO[i]}, {sT0}, {64*2688}
    """)

def prologue(code_len):
    o = I(f"""
    s_lshr_b32 {sBR}, s2, 7
    s_cmp_ge_u32 {sBR}, 2
    s_cbranch_scc1 L_end
    s_load_dwordx2 s[28:29], s[0:1], 0
    s_lshl_b32 {sT0}, {sBR}, 5
    s_load_dwordx2 s[56:57], s[0:1], 56
    s_add_u32 {sT0}, {sT0}, 8
    s_load_dwordx2 s[36:37], s[0:1], 80
    s_load_dwordx2 s[32:33], s[0:1], {sT0}
    """)
    if cfg.stamps: o += I("s_memtime s[92:93]\ns_memrealtime s[98:99]")
    o += I(f"""
    s_getpc_b64 {sTM}
    v_lshrrev_b32 v12, 6, v0
    s_lshr_b32 {sJ}, s2, 3
    v_readfirstlane_b32 {sWV}, v12
    v_and_b32 v13, 63, v0
    s_and_b32 s94, s94, 0xffffff00
    s_lshl3_add_u32 {sT0}, {sJ}, {sWV}
    s_lshl_b32 {sT0}, {sT0}, 7
    v_and_b32 v14, 32, v0
    v_lshl_add_u32 v14, v14, 10, {sT0}
    v_min_u32 v14, {H(code_len - 4)}, v14
    global_load_dword {v(vJ)}, v14, {sTM}
    """)
    if cfg.map == 'g82':
        o += I(f"""
        s_and_b32 {sR}, {sJ}, 7
        s_and_b32 {sT0}, s2, 1
        s_lshl3_add_u32 {sRB}, {sT0}, {sR}
        s_lshr_b32 {sT2}, {sJ}, 3
        s_mul_i32 {sROT}, {sT2}, 7
        s_lshr_b32 {sROT}, {sROT}, 2
        s_add_u32 {sROT}, {sROT}, {sR}""")
        pm, rs = (1, 6), 12
    else:
        o += I(f"""
        s_and_b32 {sR}, {sJ}, 3
        s_and_b32 {sT0}, s2, 3
        s_lshl2_add_u32 {sRB}, {sT0}, {sR}
        s_lshr_b32 {sT2}, {sJ}, 2
        s_lshl1_add_u32 {sROT}, {sR}, {sT2}""")
        pm, rs = (3, 4), 13
    l0 = loads(0)
    o += I(f"""
    s_sub_u32 {sT0}, {sROT}, 7
    s_min_u32 {sROT}, {sROT}, {sT0}
    v_lshrrev_b32 v14, 3, v13
    v_and_b32 v15, 7, v13
    v_lshrrev_b32 v16, 4, v13
    v_xor_b32 v17, v15, v16
    s_lshl3_add_u32 {sT0}, {sRB}, {sWV}
    s_mul_i32 {sT0}, {sT0}, {16*896}
    v_mul_u32_u24 v18, 896, v14
    v_add_u32 v18, {sT0}, v18
    v_lshl_add_u32 {v(vXA)}, v17, 4, v18
    v_xor_b32 {v(vXA+1)}, 64, {v(vXA)}
    v_add_u32 {v(vXA+1)}, {7168-1024}, {v(vXA+1)}
    v_min_u32 v26, 447, v0
    v_lshlrev_b32 v27, 1, v26
    s_lshl_b32 {sM2}, {sWV}, 11
    s_lshl_b32 {sXO[0]}, {sROT}, 7
    s_mov_b32 s30, 1835008
    s_mov_b32 s31, 0x20000
    """) + l0[0][:1] + I(f"""
    s_waitcnt lgkmcnt(0)
    global_load_ushort v28, v27, s[56:57]""") + l0[0][1:] + l0[1]
    o += I(f"""
    s_load_dword {sNONCE}, s[36:37], {WS_E}
    s_load_dwordx2 s[40:41], s[0:1], 24
    s_load_dwordx2 s[44:45], s[0:1], 48
    s_load_dwordx2 s[48:49], s[0:1], 64
    s_load_dwordx2 s[52:53], s[0:1], 16
    s_and_b32 {sT2}, {sT2}, {pm[0]}
    s_and_b32 {sP}, s2, {pm[1]}
    s_add_u32 {sP}, {sP}, {sT2}
    v_and_b32 v17, 1, v16
    v_lshlrev_b32 v17, 2, v17
    v_xor_b32 v17, v17, v15
    v_mul_u32_u24 v18, 2688, v14
    v_lshl_add_u32 v18, v17, 4, v18
    s_mul_i32 {sT0}, {sWV}, {8*2688}
    s_lshl4_add_u32 {sT1}, {sBR}, 112
    s_mul_i32 {sT1}, {sT1}, {sP}
    s_add_u32 {sT1}, {sT1}, {sT0}
    s_cmp_eq_u32 {sP}, 7
    s_cselect_b32 {sT2}, 0, 8
    s_cmp_eq_u32 {sBR}, 1
    s_cselect_b32 {sT2}, {sT2}, 7
    v_add_u32 v19, {sT1}, v18
    v_cmp_le_u32 vcc, {sT2}, v17
    v_mov_b32 v20, {H(OOB)}
    s_mul_i32 {sT1}, {sP}, 112
    s_add_u32 {sT1}, {sT1}, {sT0}
    v_cndmask_b32 {v(vWAa)}, v19, v20, vcc
    v_add_u32 {v(vWAp)}, {sT1}, v18
    s_lshl_b32 {sM1}, {sWV}, 10
    s_mul_i32 {sWO[0]}, {sROT}, {64*2688}
    s_mov_b32 s34, 1204224
    s_mov_b32 s35, 0x20000
    """) + l0[2]
    if cfg.wopf == 'early':
        o += I(f"""
        s_lshr_b32 {sT1}, {sWV}, 1
        s_lshl2_add_u32 {sT0}, s2, {sT1}
        s_mul_i32 {sT0}, {sT0}, 392
        s_and_b32 {sT0}, {sT0}, 0xffffff80
        s_min_u32 {sT0}, {sT0}, {401408 - 512}
        v_lshl_add_u32 v19, v16, 7, {sT0}
        global_load_dword {v(vJ)}, v19, s[58:59]""")
    o += I(f"s_cmp_eq_u32 {sBR}, 1\ns_cbranch_scc1 L_pathB")
    return o

def setup(isA):
    rs = 12 if cfg.map == 'g82' else 13
    l1 = loads(1)
    o = ([] if isA else I("L_pathB:") + flat(loadv(0))) + chunk(1) + flat(l1[:2])
    if cfg.stamps: o += I(f"v_writelane_b32 {v(vST)}, s92, 0\nv_writelane_b32 {v(vST)}, s98, 30\nv_writelane_b32 {v(vST)}, s98, 32")
    o += I(f"""
    s_and_b32 {sXCD}, s2, 7
    s_lshl_b32 {sR}, {sR}, {rs}
    s_mov_b32 s38, {H(WS_BYTES)}
    s_mov_b32 s39, 0x20000
    s_mov_b32 s43, 0x20000
    s_mov_b32 s47, 0x20000
    s_mov_b32 s50, 1835008
    s_mov_b32 s51, 0x20000
    s_mov_b32 s54, 25088
    s_mov_b32 s55, 0x20000
    s_cmp_ge_u32 {sJ}, 4
    s_cselect_b32 s42, 401408, 0
    s_cselect_b32 s46, 401408, 0
    s_cselect_b32 {sACT}, 1, 0
    s_mov_b32 s90, 0
    s_mov_b32 s91, -1
    s_mov_b32 s8, 0xf7f77f7f
    s_mov_b32 s9, 0xf7f77f7f
    s_mov_b32 s10, -1
    s_mov_b32 s11, 0xffff
    s_mov_b32 s12, 0x0fffffff
    s_mov_b32 s13, 0x0fffffff
    s_lshr_b32 {sI}, {sWV}, 2
    s_bfe_u32 {sTH}, {sWV}, 0x10001
    s_and_b32 {sHD}, {sWV}, 1
    s_lshl1_add_u32 {sH}, {sP}, {sHD}
    s_lshl1_add_u32 {sT4}, {sTH}, {sI}
    s_lshl2_add_u32 {sTG}, {sRB}, {sT4}
    v_lshlrev_b32 {v(vL16)}, 4, v13
    """)
    for i in range(2, 7): o += chunk(i)
    o += I(f"""
    s_lshl_b32 {sT0}, {sROT}, 6
    v_subrev_u32 v18, {sT0}, v26
    v_add_u32 v19, 448, v18
    v_min_u32 v18, v18, v19
    v_bfe_u32 v19, v18, 1, 1
    v_lshlrev_b32 v19, 6, v19
    v_xor_b32 v19, 112, v19
    v_xor_b32 v18, 0x1c0, v18
    v_subrev_u32 v18, 64, v18
    v_lshl_add_u32 v27, v18, 7, v19
    v_mov_b32 v29, 0
    v_mov_b32 v31, 0
    """)
    o += I(f"""
    s_max_u32 {sT0}, {sJ}, 4
    s_sub_u32 {sT0}, {sT0}, 4
    s_mul_i32 {sT1}, {sT0}, 37
    s_lshr_b32 {sT1}, {sT1}, 8
    s_lshl2_add_u32 {sTB}, {sXCD}, {sT1}
    s_mul_i32 {sT1}, {sT1}, 7
    s_sub_u32 {sCG}, {sT0}, {sT1}
    s_and_b32 {sT0}, {sWV}, 3
    s_mul_i32 {sT0}, {sT0}, {16*896}
    s_lshl_b32 {sT1}, {sCG}, 7
    s_add_u32 {sT0}, {sT0}, {sT1}
    v_mul_u32_u24 v18, 896, v14
    v_lshl_add_u32 v18, v17, 4, v18
    v_add_u32 {v(vWOA)}, {sT0}, v18
    v_add_u32 {v(vWOA+1)}, {8*896-1024}, {v(vWOA)}
    s_lshl_b32 {sT0}, {sBR}, 6
    s_add_u32 {sT0}, {sT0}, {sTG}
    s_lshl4_add_u32 {sT0}, {sT0}, {sH}
    s_lshl_b32 {sT1}, {sT0}, 11
    s_add_u32 {sT1}, {sT1}, {H(WS_O)}
    v_add_u32 {v(vOST)}, {sT1}, {v(vL16)}
    s_lshr_b32 {sT1}, {sT0}, 2
    s_lshl_b32 {sT1}, {sT1}, 5
    s_and_b32 {sT0}, {sT0}, 3
    s_add_u32 {sT0}, {sT0}, {sT1}
    s_lshl2_add_u32 {sF2}, {sT0}, {H(WS_FO)}
    """)
    o += I(f"""
    v_and_b32 v14, 31, v13
    v_lshrrev_b32 v15, 5, v13
    v_bfe_u32 v18, v13, 1, 3
    v_xor_b32 v18, v18, v15
    v_lshlrev_b32 v18, 4, v18
    v_lshl_add_u32 v18, v14, 7, v18
    s_lshl_b32 {sT0}, {sT4}, 12
    s_add_u32 {sT0}, {sT0}, {B1}
    v_add_u32 {v(vXR)}, {sT0}, v18
    v_xor_b32 {v(vXR+1)}, 32, {v(vXR)}
    v_xor_b32 {v(vXR+2)}, 64, {v(vXR)}
    v_xor_b32 {v(vXR+3)}, 96, {v(vXR)}
    """)
    for s in range(4): o += I(f"v_add_u32 {v(vXR+4+s)}, {B2-B1}, {v(vXR+s)}")
    o += I(f"""
    v_bfe_u32 v16, v13, 2, 2
    v_bfe_u32 v17, v13, 4, 1
    v_and_b32 v18, 3, v13
    v_lshl_add_u32 v17, v17, 2, v18
    s_mul_i32 {sT0}, {sHD}, 56
    s_lshl_b32 {sT1}, {sHD}, 3
    s_sub_u32 {sT1}, 120, {sT1}
    v_lshl_add_u32 v18, v17, 3, {sT0}
    v_mov_b32 v19, {sT1}
    v_cmp_eq_u32 vcc, 7, v17
    v_lshrrev_b32 v20, 1, v16
    v_lshlrev_b32 v20, 6, v20
    v_cndmask_b32 v18, v18, v19, vcc
    v_xor_b32 v18, v18, v20
    v_lshl_add_u32 v19, v15, 3, v16
    v_lshl_add_u32 {v(vWRp)}, v19, 7, v18
    """)
    return o, l1[2:] + ([] if isA else loadv(1))

def late_loads(l1w, isA):
    o = I(f"""s_cmp_{'ge' if isA else 'eq'}_u32 {sWV}, {4 if isA else 3}
    s_cselect_b32 {sT0}, {sF1}, {sF2}
    v_mov_b32 {v(vT)}, {sF2}
    v_writelane_b32 {v(vT)}, {sT0}, 1
    s_mov_b64 exec, 3
    buffer_store_dword v29, {v(vT)}, {sWS}, 0 offen sc1
    s_mov_b64 exec, -1""")
    o += flat(l1w)
    o += I(f"""
    s_mul_i32 {sNONCE}, {sNONCE}, 1664525
    s_add_u32 {sNONCE}, {sNONCE}, 1013904223
    s_or_b32 {sNONCE}, {sNONCE}, 1
    s_mov_b32 s27, {sNONCE}""")
    if isA:
        o += I(f"""s_mul_i32 {sT1}, {sP}, 3136
        s_add_u32 {sT1}, {sT1}, {sM1}
        s_cmp_lt_u32 {sWV}, 4
        s_cselect_b32 {sT1}, {sT1}, {H(OOB)}
        s_add_u32 m0, {sM1}, {XR}""") + I(f"buffer_load_dwordx4 {v(vL16)}, {sPHI}, {sT1} offen lds", tag='B2')
    if cfg.tlb:
        o += I(f"""s_lshl_b32 {sT0}, {sWV}, 20
        s_add_u32 {sT0}, {sT0}, 0x1ff000
        v_mov_b32 {v(vT)}, {sT0}
        buffer_load_dword {v(vJ)}, {v(vT)}, {sWS}, 0 offen""")
    o += I("v_mov_b32 v30, v28") + I("ds_write_b128 v27, v[28:31]", tag='B1')
    return o

def loads(g):
    ps, i = divmod(g, 7)
    out = []
    if ps == 0:
        base = GRP[i % 3]
        for q in range(2):
            x = I(f"buffer_load_dwordx4 {v(vXA+q)}, {sX}, {sXO[i]} offen offset:{q*1024} lds", tag=f'L{g}')
            out.append(I(f"s_add_u32 m0, {sM2}, {base}") + x if q == 0 else x)
        wb, sec = base + 16384, 1
    elif ps == 1: wb, sec = WV + i * 8192, 2
    else: wb, sec = WQ + (6 - i) * 8192, 0
    d = I(f"buffer_load_dwordx4 {v(vWAp if ps == 2 else vWAa)}, {sW}, {sWO[i]} offen offset:{sec*896} lds", tag=f'L{g}')
    m = I(f"s_add_u32 m0, {sM1}, {wb - sec*896}")
    if ps == 2: out.append(m + I(f"s_mov_b64 exec, {sEQ}") + d + I("s_mov_b64 exec, -1"))
    else: out.append(m + d)
    return out

def loads2(g):
    i = g - 7; wb = WV + i * 8192 - 1792
    t = f"buffer_load_dwordx4 {v(vWAa)}, {sW}, @ offen offset:1792 lds"
    return (I(f"s_add_u32 m0, {sM1}, {wb}\ns_add_u32 s99, {sWO[i]}, {32*2688}") + I(t.replace('@', sWO[i]), tag=f'L{g}') +
            I(f"s_add_u32 m0, {sM1}, {wb + 4096}") + I(t.replace('@', 's99'), tag=f'L{g}'))

def loadv(c):
    return [I(f"s_add_u32 m0, {sM1}, {G3 + (c % 3) * 8192 - 1792}") + I(f"buffer_load_dwordx4 {v(vWAa)}, {sW}, {sWO[c]} offen offset:1792 lds", tag=f'L{c}')]

def reads(g, buf=None, wb=None, tag=None):
    ps, i = divmod(g, 7)
    if wb is None: wb = (GRP[i % 3] + 16384) if ps == 0 else (WV + i * 8192 if ps == 1 else WQ + (6 - i) * 8192)
    buf = WF + 16 * ((g & 1) if buf is None else buf)
    tag = tag or f'B{g+1}'
    out = []
    for s in range(4):
        for jj in range(2):
            o_ = wb + s * 2048 + jj * 512
            r, off = (vWRp, o_) if ps == 2 else sel2((vWRa, vWRa + 1), o_)
            out += I(f"ds_read_b64_tr_b16 {v(buf+4*s+2*jj, 2)}, {v(r)} offset:{off}", tag=tag)
        if ps == 0:
            r, off = sel2((vXR + s, vXR + 4 + s), GRP[i % 3])
            out += I(f"ds_read_b128 {v(XF+16*i+4*s, 4)}, {v(r)} offset:{off}", tag=tag)
    return out

def mms(g, isA, buf=None):
    ps, i = divmod(g, 7)
    buf = WF + 16 * ((g & 1) if buf is None else buf)
    d = v(ACC1 if ps == 1 else ACC0, 16)
    out = []
    for s in range(4):
        w = v(buf + 4 * s, 4); x = v(XF + 16 * i + 4 * s, 4)
        c = '0' if (i == 0 and s == 0 and not (ps == 1 and isA)) else d
        out.append(mfma(d, x, w, c) if ps == 1 else mfma(d, w, x, c))
    return out

def bar(*tags): return WAIT(*tags) + I("s_barrier")
def Ls(a_, b_): return [f'L{k}' for k in range(a_, b_ + 1)]
def lds_(*gs): return [u for k in gs for u in loads(k)]
def ticks(g0, g1, isA, bars, plan={}, pre={}, fill={}, post={}):
    o = []
    for g in range(g0, g1):
        if g in bars: o += bar(f'B{g}', *Ls(0, bars[g]))
        if g in cfg.tk: o += stamp(21 + cfg.tk.index(g))
        o += flat(pre.get(g, []))
        rd = reads(g) if g <= 20 else []
        mm = mms(g - 1, isA) if (g >= 1 and g != 7) else []
        o += merge(mm, rd, lds_(*plan.get(g, [])), fill.get(g, []), span=[1, 0.6 if (g + 1) in bars else 1, 1, 1])
        o += flat(post.get(g, []))
        if g in (0, 14, 21): o += stamp(1 + g // 7)
    return o
P1BARS = {g: g for g in range(7)}
P1PLAN = {0: [2], 1: [3], 2: [4], 3: [5], 4: [6], 5: [7]}

def one_lane(ins): return I("s_mov_b64 exec, 1") + ins + I("s_mov_b64 exec, -1")
def flag_set(n): return I(f"s_atomic_add {sNONCE}, s[36:37], {(sF1, sF2)[n]}")

spin_blocks = []
def spoll_loads(spec):
    return '\n'.join(f"s_load_dword{'' if n == 1 else 'x%d' % n} {'s%d' % r if n == 1 else 's[%d:%d]' % (r, r+n-1)}, {b}, {off} glc" for r, n, b, off in spec)
def pairs(spec): return [r + k for r, n, _, _ in spec for k in range(0, n, 2) if not (n == 1 and r & 1)]
def spoll_cmp(spec):
    regs = pairs(spec); d = regs[0]; t = ''
    for k, r in enumerate(regs):
        t += f"s_xor_b64 s[{r}:{r+1}], s[{r}:{r+1}], {sN2}\n"
        if k: t += f"s_or_b64 s[{d}:{d+1}], s[{d}:{d+1}], s[{r}:{r+1}]\n"
    return t
def poll_issue(spec): return I(spoll_loads(spec), tag='poll')
def spin_text(name, spec):
    return f"""s_mov_b32 {sSPIN}, 0
L_spin_{name}_l:
{spoll_loads(spec)}
s_add_u32 {sSPIN}, {sSPIN}, 1
s_cmp_gt_u32 {sSPIN}, {SPIN}
s_waitcnt lgkmcnt(0)
s_cbranch_scc1 L_go_{name}
{spoll_cmp(spec)}s_cbranch_scc1 L_spin_{name}_l
"""
def spin(name, spec): return I(spin_text(name, spec) + f"L_go_{name}:")
def poll_check(name, spec):
    spin_blocks.append(text(I(f"L_spin_{name}:\n" + spin_text(name, spec) + f"s_branch L_go_{name}")))
    return I(spoll_cmp(spec) + f"s_cbranch_scc1 L_spin_{name}\nL_go_{name}:")

vPOLL, vPA = 21, 9
def vpoll_issue(): return I(f"buffer_load_dword {v(vPOLL)}, {v(vPA)}, {sWS}, 0 offen sc1")
def vpoll_check(name):
    spin_blocks.append(f"""L_spin_{name}:
    s_mov_b32 {sSPIN}, 0
L_spin_{name}_l:
    buffer_load_dword {v(vPOLL)}, {v(vPA)}, {sWS}, 0 offen sc1
    s_add_u32 {sSPIN}, {sSPIN}, 1
    s_waitcnt vmcnt(0)
    v_cmp_ne_u32 vcc, {v(vPOLL)}, {v(vNON)}
    s_cmp_gt_u32 {sSPIN}, {SPIN}
    s_cbranch_scc1 L_go_{name}
    s_cbranch_vccnz L_spin_{name}_l
    s_branch L_go_{name}
""")
    return I(f"""v_cmp_ne_u32 vcc, {v(vPOLL)}, {v(vNON)}
    s_cbranch_vccnz L_spin_{name}
    L_go_{name}:""")

def cvt(dst, src, n=8):
    return [Ins(f"v_cvt_pk_bf16_f32 {v(dst+i)}, {v(src+2*i)}, {v(src+2*i+1)}") for i in range(n)]

def gate(isB, tmp):
    src = ACC0 + 12; g = vG
    return I(f"""v_mul_f32 {v(g)}, {H(f2u(LOG2E if isB else -LOG2E))}, {v(src)}
    v_mul_f32 {v(tmp)}, {H(f2u(LOG2E if isB else -LOG2E))}, {v(src)}
    v_permlane32_swap_b32 {v(tmp)}, {v(g)}
    v_exp_f32 {v(g)}, {v(g)}
    v_add_f32 {v(g)}, 1.0, {v(g)}
    v_rcp_f32 {v(g)}, {v(g)}""")

def finish_o(acc, dst, tmp, eps):
    o = I(f"""v_mov_b32 {v(tmp)}, {v(acc+12)}
    v_mov_b32 {v(tmp+1)}, {v(acc+12)}
    v_cndmask_b32 {v(acc+12)}, {v(acc+12)}, 0, {sHALF}
    v_permlane32_swap_b32 {v(tmp+1)}, {v(tmp)}""")
    if eps: o += I(f"v_add_f32 {v(tmp)}, {H(f2u(1e-6))}, {v(tmp)}")
    o += I(f"v_rcp_f32 {v(tmp)}, {v(tmp)}\nv_mul_f32 {v(tmp)}, {v(tmp)}, {v(vG)}")
    for i in range(8):
        o += I(f"v_mul_f32 {v(acc+2*i)}, {v(acc+2*i)}, {v(tmp)}\nv_mul_f32 {v(acc+2*i+1)}, {v(acc+2*i+1)}, {v(tmp)}")
        o += cvt(dst + i, acc + 2 * i, 1)
        if i % 4 == 3: o += I(f"buffer_store_dwordx4 {v(dst+i-3,4)}, {v(vOST)}, {sWS}, 0 offen offset:{(i//4)*1024} sc1", tag='o')
    return o

def wo_prefetch(t):
    return I(f"""
    s_and_b32 {sT0}, s2, 127
    s_lshl1_add_u32 {sT0}, {sT0}, {sTH}
    s_mul_i32 {sT0}, {sT0}, 1568
    s_and_b32 {sT0}, {sT0}, 0xffffff80
    v_bfe_u32 {v(t)}, v0, 2, 4
    v_min_u32 {v(t)}, 12, {v(t)}
    v_lshlrev_b32 {v(t)}, 7, {v(t)}
    s_cmp_eq_u32 {sHD}, 1
    s_cselect_b32 s52, s44, s40
    s_cselect_b32 s53, s45, s41
    s_mov_b32 s54, 401408
    buffer_load_dword {v(vJ)}, {v(t)}, s[52:55], {sT0} offen""")

def wo_loads(srd, base, who):
    out = []
    for i in range(7):
        out.append(I(f"s_add_u32 m0, {sM2}, {H(base + i*8192 - 8192*who)}\ns_mov_b32 {sWOO}, {i*64*896}") +
                   I(f"buffer_load_dwordx4 {v(vWOA)}, {srd}, {sWOO} offen lds", tag='wo'))
        out.append(I(f"buffer_load_dwordx4 {v(vWOA+1)}, {srd}, {sWOO} offen offset:1024 lds", tag='wo'))
    return out

def wo_loads8(srd, base, i):
    return [I(f"s_add_u32 m0, {sM2}, {H(base + k*8192 - 8192*i)}\ns_mov_b32 {sWOO}, {k*64*896}") +
            I(f"buffer_load_dwordx4 {v(vWOA+i)}, {srd}, {sWOO} offen offset:{1024*i} lds", tag='wo') for k in range(7)]

TFAR, TDIAG = SB, SB + 16
def sreg(u): return TFAR if u == 0 else (TDIAG if u == 8 else SB + 16 * (u + 1))
KFr = vXR
KVP = [(52, 1, sFB, 's92'), (53, 1, sFB, 's94')]
def pathB_p1():
    o, l1w = setup(False)
    o += I(f"""
    s_lshl_b32 {sT0}, {sHD}, 6
    v_lshl_add_u32 v18, v17, 3, {sT0}
    v_xor_b32 v18, v18, v20
    v_lshl_add_u32 v18, v19, 7, v18
    v_add_u32 {v(vWRa)}, {B1}, v18
    v_add_u32 {v(vWRa+1)}, {B2}, v18
    v_lshlrev_b32 v18, 2, v15
    v_sub_u32 v18, v14, v18
    v_mov_b32 v19, {H(f2u(-BIG))}""")
    for r in range(0, 16, 2):
        b = (r & 3) + 8 * (r >> 2)
        o += I(f"""v_cmp_le_i32 vcc, {b}, v18
        v_cmp_le_i32 {sTM}, {b+1}, v18
        v_cndmask_b32_e64 {v(TDIAG+r)}, v19, 0, vcc
        v_cndmask_b32_e64 {v(TFAR+r)}, 0, v19, vcc
        v_cndmask_b32_e64 {v(TDIAG+r+1)}, v19, 0, {sTM}
        v_cndmask_b32_e64 {v(TFAR+r+1)}, 0, v19, {sTM}""")
    o += I(f"""
    s_mul_i32 {sT0}, {sTG}, {TS}
    s_lshl_b32 {sT1}, {sH}, 11
    s_add_u32 {sT1}, {sT1}, {sT0}
    s_add_u32 {sT1}, {sT1}, {H(WS_K)}
    s_lshl_b32 {sT2}, {sH}, 9
    s_add_u32 {sO1}, {sT2}, {sT0}
    s_add_u32 {sO1}, {sO1}, {H(WS_V)}
    s_cmp_eq_u32 {sP}, 7
    s_cselect_b32 {sT1}, {H(OOB)}, {sT1}
    s_cselect_b32 {sO1}, {H(OOB)}, {sO1}
    v_bfe_u32 v18, v13, 4, 1
    v_lshl_add_u32 v18, v18, 1, v15
    v_and_b32 v19, 0xf0, {v(vL16)}
    v_lshl_add_u32 v18, v18, 8, v19
    v_add_u32 {v(vKST)}, {sT1}, v18
    s_lshl3_add_u32 {sT2}, {sRB}, {sP}
    s_lshl_b32 {sT2}, {sT2}, 7
    s_add_u32 {sF1}, {sT2}, {WS_FK}
    v_mul_u32_u24 v18, 7168, v15
    v_lshl_add_u32 {v(vDMA)}, v14, 4, v18
    s_mov_b32 {sWOAB}, {WOA}
    s_mov_b32 {sSCR}, {VT}
    """)
    o += I(f"""
    s_mul_i32 {sT2}, {sHD}, 24576
    s_lshl_b32 {sT1}, {sT4}, 11
    s_add_u32 {sTRB}, {sT1}, {sT2}
    s_add_u32 {sT1}, {sTRB}, {VT}
    v_add_u32 {v(vTRR)}, {sT1}, {v(vL16)}
    s_and_b32 {sT0}, {sWV}, 3
    s_lshl_b32 {sSL[1]}, {sT0}, 13
    s_add_u32 {sT0}, {sT0}, {sRB}
    s_sub_u32 {sT1}, {sT0}, 2
    s_mul_i32 {sSL[0]}, {sT1}, {4*TS}
    s_cmp_ge_u32 {sT0}, 2
    s_cselect_b32 {sSL[0]}, {sSL[0]}, {H(OOB)}
    s_cselect_b32 {sT1}, {sT1}, {sRB}
    s_lshl_b32 {sT1}, {sT1}, 10
    s_add_u32 {sT1}, {sT1}, {WS_FK}
    s_add_u32 s100, s36, {sT1}
    s_addc_u32 s101, s37, 0
    s_max_u32 s92, {sP}, 1
    s_sub_u32 s92, s92, 1
    s_lshl_b32 s92, s92, 7
    s_lshl_b32 s94, {sP}, 7
    """)
    o += late_loads(l1w, False)
    t = vT
    kpad = I(f"""
        v_bfe_u32 {v(t)}, v0, 4, 2
        v_min_u32 {v(t)}, 2, {v(t)}
        v_add_u32 {v(t+1)}, {sRB}, {v(t)}
        v_cmp_gt_u32 vcc, 2, {v(t+1)}
        v_and_b32 {v(t+1)}, 0xf0, {v(vL16)}
        v_lshl_add_u32 {v(t)}, {v(t)}, 13, {v(t+1)}
        s_add_u32 {sT0}, {sTRB}, {KT + 1792}
        v_add_u32 {v(t)}, {sT0}, {v(t)}
        v_mov_b32 {v(t+1)}, {H(f2u(-BIG) & 0xffff0000)}
        v_mov_b32 {v(t+3)}, 0
        v_cndmask_b32_e64 {v(t+2)}, 0, {v(t+1)}, vcc
        v_mov_b32 {v(t+5)}, 0
        v_mov_b32 {v(t+4)}, {v(t+2)}""") + I(f"ds_write_b128 {v(t)}, {v(t+2,4)}", tag='trK')
    vpad = I(f"""
        v_bfe_u32 {v(t)}, v0, 4, 2
        v_min_u32 {v(t)}, 2, {v(t)}
        v_bfe_u32 {v(t+1)}, v0, 2, 2
        v_lshlrev_b32 {v(t+1)}, 9, {v(t+1)}
        v_lshl_add_u32 {v(t)}, {v(t)}, 13, {v(t+1)}
        v_and_b32 {v(t+1)}, 3, v0
        v_cmp_eq_u32 vcc, 0, {v(t+1)}
        v_lshl_add_u32 {v(t)}, {v(t+1)}, 4, {v(t)}
        s_add_u32 {sT0}, {sTRB}, {VT + 448}
        v_add_u32 {v(t)}, {sT0}, {v(t)}
        v_mov_b32 {v(t+1)}, 0x3f803f80
        v_cndmask_b32_e64 {v(t+2)}, 0, {v(t+1)}, vcc
        v_mov_b32 {v(t+3)}, {v(t+2)}
        v_mov_b32 {v(t+4)}, {v(t+2)}
        v_mov_b32 {v(t+5)}, {v(t+2)}""")
    pk_ = []
    for m in range(2):
        pk_ += cvt(KFr + 4 * m, ACC0 + 8 * m, 4)
        pk_ += I(f"v_permlane16_swap_b32 {v(KFr+4*m)}, {v(KFr+4*m+2)}\nv_permlane16_swap_b32 {v(KFr+4*m+1)}, {v(KFr+4*m+3)}")
        pk_ += I(f"buffer_store_dwordx4 {v(KFr+4*m,4)}, {v(vKST)}, {sWS}, 0 offen offset:{m*1024} sc1", tag='stK')
    global PADS
    PADS = kpad + vpad + I(f"ds_write_b128 {v(t)}, {v(t+2,4)}", tag='trK')
    for c in range(7):
        o += bar(f'B{c}', f'L{c}')
        if c in cfg.tk: o += stamp(21 + cfg.tk.index(c))
        ld = ((loads(c + 2) + loadv(c + 2)) if c + 2 < 7 else []) + lds_(*cfg.planB.get(c, []))
        if c == cfg.wopf: ld = ld + wo_prefetch(vT)
        o += merge(mms(7 + c - 1, False, 1) if c else [], reads(c, 0, None, 'R'), ld[:2])
        o += merge(mms(c, False, 0), reads(7 + c, 1, G3 + (c % 3) * 8192, f'B{c+1}'), ld[2:], span=[1, 0.6, 1])
        if c == 0: o += stamp(1)
    VFr = QF
    pv_ = cvt(VFr, ACC1, 4) + I(f"buffer_store_dwordx4 {v(VFr,4)}, {v(vDMA)}, {sWS}, {sO1} offen sc1", tag='stK')
    pv_ += cvt(VFr + 4, ACC1 + 8, 4) + I(f"s_add_u32 {sO1}, {sO1}, 14336") + I(f"buffer_store_dwordx4 {v(VFr+4,4)}, {v(vDMA)}, {sWS}, {sO1} offen sc1", tag='stK')
    n0 = cfg.n0
    o += mms(13, False, 1) + pk_ + pv_ + stamp(3) + (flat(wo_prefetch(vT)) if cfg.wopf == 7 else []) + flat(lds_(14 + n0, 15 + n0))
    o += bar('B7', *Ls(14, 13 + n0)) + reads(14) + ticks(15, 14 + n0, False, {}) + mms(13 + n0, False) + flat(lds_(*range(16 + n0, min(21, 18 + n0))))
    o += bar('stK', *Ls(14, 15 + n0)) + stamp(2)
    o += I(f"s_cmp_eq_u32 {sI}, 1\ns_cbranch_scc1 L_B1")
    return o

def kread(u): return [Ins(f"ds_read_b64 {v(RG+8*(u%4)+2*q,2)}, {v(vT)} offset:{u*2048+q*512}") for q in range(4)]
def vread(u): return [Ins(f"ds_read_b128 {v(RG+8*(u%4)+4*s,4)}, {v(vTRR)} offset:{u*2048+s*1024}") for s in range(2)]

def pathB_p2(i):
    o = I("L_B1:") if i else []
    qp = gate(True, vT)
    for e in range(8):
        qp += I(f"v_mul_f32 {v(ACC0+2*e)}, {H(f2u(CB))}, {v(ACC0+2*e)}\nv_mul_f32 {v(ACC0+2*e+1)}, {H(f2u(CB))}, {v(ACC0+2*e+1)}") + cvt(QF + e, ACC0 + 2 * e, 1)
    qp += I(f"""v_cndmask_b32 {v(QF+6)}, {v(QF+6)}, 1.0, {sHALF}
    v_bfe_u32 {v(vT)}, v0, 4, 1
    v_mul_u32_u24 {v(vT)}, 248, {v(vT)}
    v_bfe_u32 {v(vT+1)}, v0, 5, 1
    v_lshl_add_u32 {v(vT)}, {v(vT+1)}, 8, {v(vT)}
    v_sub_u32 {v(vT)}, {v(vTRR)}, {v(vT)}
    v_add_u32 {v(vT)}, {KT - VT}, {v(vT)}
    v_mov_b32 {v(vT+1)}, 0x3f803f80
    v_mov_b32 {v(vT+2)}, 0x3f80
    v_cndmask_b32 {v(SUB)}, {v(vT+1)}, 0, {sHALF}
    v_cndmask_b32 {v(SUB+1)}, {v(vT+2)}, 0, {sHALF}
    v_mov_b32 {v(SUB+2)}, 0
    v_mov_b32 {v(SUB+3)}, 0
    v_mov_b32 {v(SUB+6)}, 0
    v_mov_b32 {v(SUB+7)}, 0""")
    bk = WAIT('dmaK', 'trK') + stamp(12) + I("s_barrier") + stamp(13)
    n0 = cfg.n0; rest = flat(lds_(*range(18 + n0, 21)))
    def qrun(a_, b_): return reads(a_) + ticks(a_ + 1, b_, False, {}) + (mms(b_ - 1, False) if b_ < 22 else [])
    if i == 1:
        vd = I(f"s_mul_i32 {sO2}, {sP}, 896\ns_add_u32 {sO2}, {sO2}, {sSL[0]}\ns_add_u32 {sO2}, {sO2}, {H(WS_V)}\ns_mov_b64 exec, {sEV}")
        for q in range(8):
            for hd in range(2):
                vd += I(f"s_add_u32 m0, {sSL[1]}, {VT + hd*24576 + q*1024}\ns_add_u32 s99, {sO2}, {q*14336 + hd*448}")
                vd += I(f"buffer_load_dwordx4 {v(vDMA)}, {sWS}, s99 offen sc1 lds", tag='dmaV')
        vd += I("s_mov_b64 exec, -1")
        pf = wo_prefetch(vT) if cfg.wopf == 'b2' else []
        o += rest + PADS + p3_setup() + qrun(14 + n0, 16 + n0) + pf[:-1] + bar('L20') + pf[-1:] + qrun(16 + n0, 22) + bk
        o += I(f"s_cmp_eq_u32 {sWV}, 7\ns_cbranch_scc1 L_w7") + vd + I("L_w7:") + prio(2) + stamp(5) + qp
    else:
        kd = []
        for hf in range(2):
            if hf: kd += I(f"s_mov_b64 exec, {sEK}")
            for tq in range(4):
                for hd in range(2):
                    kd += I(f"s_add_u32 m0, {sSL[1]}, {KT + hd*24576 + tq*2048}\ns_add_u32 s99, {sO2}, {tq*TS + hd*1792}")
                    kd += I(f"buffer_load_dwordx4 {v(vL16)}, {sWS}, s99 offen offset:{hf*1024} sc1 lds", tag='dmaK')
        kd += I("s_mov_b64 exec, -1")
        o += prio(1) + I(f"s_cmp_lg_u32 {sWV}, 3\ns_cbranch_scc1 L_nw3") + flag_set(0) + I("L_nw3:")
        o += rest + PADS + p3_setup() + I(f"s_mul_i32 {sO2}, {sP}, 3584\ns_add_u32 {sO2}, {sO2}, {sSL[0]}\ns_add_u32 {sO2}, {sO2}, {H(WS_K)}")
        spin_blocks.append("L_w3:\n    s_waitcnt vmcnt(0) lgkmcnt(0)\n    s_branch L_w3k\n")
        o += I(f"s_cmp_eq_u32 {sWV}, 3\ns_cbranch_scc1 L_w3")
        o += spin('K', KVP) + stamp(14) + kd + I("L_w3k:") + bar('L20') + qrun(14 + n0, 22) + qp + bk
    o += prio(3 - i) + kread(0) + kread(1) + kread(2)
    M = vT + 2
    for u in range(11):
        mm = []
        if u < 9:
            d = v(sreg(u), 16); k = RG + 8 * (u % 4)
            mm = [mfma(d, v(k,4), v(QF,4), d if u in (0, 8) else '0'), mfma(d, v(k+4,4), v(QF+4,4), d)]
        xx = []
        if u >= 2:
            src = sreg(u - 2)
            for e in range(8):
                if u == 2 and e == 0: xx += I(f"v_max_f32 {v(M)}, {v(src)}, {v(src+1)}")
                else: xx += I(f"v_max3_f32 {v(M)}, {v(M)}, {v(src+2*e)}, {v(src+2*e+1)}")
        o += merge(mm, xx, kread(u + 3) if u + 3 < 9 else [])
    o += I(f"""v_mov_b32 {v(M+1)}, {v(M)}
    v_permlane32_swap_b32 {v(M)}, {v(M+1)}
    v_max_f32 {v(M)}, {v(M)}, {v(M+1)}
    v_cvt_pk_bf16_f32 {v(M+1)}, -{v(M)}, -{v(M)}
    v_and_b32 {v(M+2)}, 0xffff0000, {v(M+1)}
    v_add_f32 {v(M)}, {v(M)}, {v(M+2)}
    v_cvt_pk_bf16_f32 {v(SUB+4)}, {v(M+2)}, -{v(M)}
    v_and_b32 {v(M+2)}, 0xffff0000, {v(SUB+4)}
    v_add_f32 {v(M)}, {v(M)}, {v(M+2)}
    v_cvt_pk_bf16_f32 {v(SUB+5)}, -{v(M)}, 0""")
    def sub(u): d = v(sreg(u), 16); return [mfma(d, v(SUB,4), v(SUB+4,4), d)]
    def PV(u):
        p = sreg(u); k = RG + 8 * (u % 4); d = v(OA, 16)
        return [mfma(d, v(k,4), v(p,4), '0' if u == 0 else d), mfma(d, v(k+4,4), v(p+4,4), d)] + (vread(u + 4) if u + 4 < 9 else [])
    o += sub(0) + sub(1)
    o += stamp(6)
    bv = WAIT('dmaV') + stamp(16) + I("s_barrier") + stamp(17) + vread(0) + vread(1) + vread(2) + vread(3)
    wa = wo_loads(sWOB, WOB, 1) + wo_loads(sWOA, WOA, 1); wb = (wo_loads(sWOB, WOB, 0) + wo_loads(sWOA, WOA, 0))[cfg.waL:]
    if i: o += prio(0) + bv + flat(wa[:cfg.waL])
    else: o += prio(1)
    nxt = 0
    for u in range(9):
        if i == 0 and u == cfg.bvE: o += bv
        if i == 1 and u == 3: o += prio(1)
        mm = sub(u + 2) if u + 2 < 9 else []
        if i or u >= cfg.bvE:
            for _ in range(3):
                if nxt < u: mm += PV(nxt); nxt += 1
        src = sreg(u); ex = []
        for q in range(8):
            ex += I(f"v_exp_f32 {v(src+2*q)}, {v(src+2*q)}\nv_exp_f32 {v(src+2*q+1)}, {v(src+2*q+1)}")
            if q >= 1: ex += cvt(src + q - 1, src + 2 * q - 2, 1)
        o += merge(ex, mm) + cvt(src + 7, src + 14, 1)
    while nxt < 9: o += PV(nxt); nxt += 1
    o += stamp(7)
    o += finish_o(OA, QF, vT, False)
    o += stamp(8)
    if i:
        o += poll_issue(OPX + OPY) + WAIT('wo') + I("s_barrier") + stamp(19) + WAIT('o', 'poll') + flag_set(1) + prio(0) + I("s_branch L_phase3")
    else:
        o += prio(0) + flat(wb[:8]) + WAIT('o') + flag_set(1) + flat(wb[8:]) + WAIT('wo') + poll_issue(OPX + OPY) + I("s_barrier") + stamp(19) + WAIT('poll')
    return o

def phi(P, EN, outP, outN, tmp, L, PADB, packed):
    o = []; EP = P
    A, B, C, D, C2, D2 = tmp, tmp + 1, tmp + 2, tmp + 4, tmp + 6, tmp + 8
    for i in range(8):
        if i == 0:
            o += I(f"v_max_f32 {v(A)}, {v(P)}, {v(P+1)}\nv_max_f32_e64 {v(B)}, -{v(P)}, -{v(P+1)}")
        else:
            o += I(f"v_max3_f32 {v(A)}, {v(A)}, {v(P+2*i)}, {v(P+2*i+1)}\nv_max3_f32 {v(B)}, {v(B)}, -{v(P+2*i)}, -{v(P+2*i+1)}")
    o += I(f"""v_permlane32_swap_b32 {v(A)}, {v(B)}
    v_max_f32 {v(A)}, {v(A)}, {v(B)}
    v_mul_f32 {v(C)}, {H(f2u(-LOG2E))}, {v(A)}
    v_mul_f32 {v(D)}, {H(f2u(-LOG2E))}, {v(A)}
    v_permlane32_swap_b32 {v(C)}, {v(D)}
    v_add_f32 {v(C2)}, {v(C)}, {v(PADB)}
    v_add_f32 {v(D2)}, {v(D)}, {v(PADB)}""")
    for i in range(8):
        c, d = (C2, D2) if i >= 6 else (C, D)
        if packed:
            o += I(f"""v_pk_fma_f32 {v(EN+2*i,2)}, {v(P+2*i,2)}, {v(L,2)}, {v(d,2)} op_sel_hi:[1,0,0] neg_lo:[1,0,0] neg_hi:[1,0,0]
            v_pk_fma_f32 {v(EP+2*i,2)}, {v(P+2*i,2)}, {v(L,2)}, {v(c,2)} op_sel_hi:[1,0,0]""")
        else:
            for e in range(2):
                o += I(f"v_fma_f32 {v(EN+2*i+e)}, -{v(P+2*i+e)}, {v(L)}, {v(d)}\nv_fma_f32 {v(EP+2*i+e)}, {v(P+2*i+e)}, {v(L)}, {v(c)}")
        for e in range(2):
            o += I(f"v_exp_f32 {v(EN+2*i+e)}, {v(EN+2*i+e)}\nv_exp_f32 {v(EP+2*i+e)}, {v(EP+2*i+e)}")
    if packed:
        for i in range(1, 8):
            for E, s in ((EP, C2), (EN, D2)):
                o += I(f"v_pk_add_f32 {v(s,2)}, {v(E,2) if i == 1 else v(s,2)}, {v(E+2*i,2)}")
        o += I(f"v_add_f32 {v(A)}, {v(C2)}, {v(C2+1)}\nv_add_f32 {v(B)}, {v(D2)}, {v(D2+1)}")
    else:
        for i in range(1, 16):
            for E, s in ((EP, A), (EN, B)):
                o += I(f"v_add_f32 {v(s)}, {v(E) if i == 1 else v(s)}, {v(E+i)}")
    o += I(f"""v_permlane32_swap_b32 {v(A)}, {v(B)}
    v_add_f32 {v(A)}, {v(A)}, {v(B)}
    v_rcp_f32 {v(C)}, {v(A)}
    v_mov_b32 {v(D)}, {v(C)}
    v_permlane32_swap_b32 {v(C)}, {v(D)}""")
    res = []
    for i in range(8):
        r_ = []
        for E, r, out in ((EP, C, outP), (EN, D, outN)):
            if packed:
                r_ += I(f"v_pk_mul_f32 {v(E+2*i,2)}, {v(E+2*i,2)}, {v(r,2)} op_sel_hi:[1,0]")
            else:
                r_ += I(f"v_mul_f32 {v(E+2*i)}, {v(E+2*i)}, {v(r)}\nv_mul_f32 {v(E+2*i+1)}, {v(E+2*i+1)}, {v(r)}")
            r_ += cvt(out + i, E + 2 * i, 1)
        res.append(r_)
    return o, res

AP, AEN = 112, 128
AWP = 24
aLr, aPADr = 10, 11
AID = 32
def proj(src): return [mfma(v(AP,16), v(AWP,4), v(src,4), '0'), mfma(v(AP,16), v(AWP+4,4), v(src+4,4), v(AP,16))]
def pathA_p1():
    o, l1w = setup(True)
    o += I(f"""
    v_add_u32 {v(vWRa)}, {B1}, {v(vWRp)}
    v_add_u32 {v(vWRa+1)}, {B2}, {v(vWRp)}
    v_mov_b32 {v(aLr)}, {H(f2u(LOG2E))}
    v_mov_b32 v18, {H(f2u(-BIG))}
    v_cndmask_b32 {v(aPADr)}, 0, v18, {sHALF}
    v_min_u32 v18, 6, v17
    v_lshl_add_u32 v19, v15, 2, v16
    v_mul_u32_u24 v20, 56, v19
    v_lshl_add_u32 v20, v18, 3, v20
    s_mul_i32 {sT0}, {sHD}, 1568
    s_add_u32 {sT0}, {sT0}, {XR}
    v_add_u32 v21, {sT0}, v20
    v_mul_u32_u24 v20, {PHS}, v19
    v_lshl_add_u32 v20, v18, 3, v20
    s_mul_i32 {sT0}, {sHD}, {128*PHS}
    s_add_u32 {sT0}, {sT0}, {KT}
    s_mul_i32 {sT1}, {sTH}, 56
    s_add_u32 {sT1}, {sT1}, {sT0}
    v_add_u32 {v(vKST)}, {sT1}, v20
    s_mul_i32 {sT1}, {sT4}, {32*PHS}
    s_add_u32 {sO1}, {sT1}, {sT0}
    s_lshl2_add_u32 {sT0}, {sHD}, {sT4}
    s_lshl_b32 {sT0}, {sT0}, 11
    s_add_u32 {sO2}, {sT0}, {A_VF}
    v_cmp_eq_u32 vcc, 28, v14
    v_mov_b32 v18, 1.0
    s_lshl1_add_u32 {sT0}, {sH}, {sTH}
    s_lshl_b32 {sSL[0]}, {sT0}, 15
    v_cndmask_b32_e64 {v(ACC1)}, 0, v18, vcc
    s_add_u32 {sSL[0]}, {sSL[0]}, {H(WS_KP)}
    s_lshl_b32 {sT0}, {sT0}, 9
    s_add_u32 {sT0}, {sT0}, {WS_FP}
    s_add_u32 s100, s36, {sT0}
    s_addc_u32 s101, s37, 0
    s_lshr_b32 {sT1}, {sRB}, 2
    s_lshl_b32 {sT1}, {sT1}, 5
    s_and_b32 {sT2}, {sRB}, 3
    s_add_u32 {sT1}, {sT1}, {sT2}
    s_lshl2_add_u32 {sF1}, {sT1}, {sT0}
    s_mov_b32 {sWOAB}, {WOA_A}
    s_mov_b32 {sSCR}, 0
    """)
    for i in range(1, 16): o += I(f"v_mov_b32 {v(ACC1+i)}, {v(ACC1)}")
    o += late_loads(l1w, True)
    wpr = [Ins(f"ds_read_b64_tr_b16 {v(AWP+4*s+2*jj,2)}, v21 offset:{(16*s+8*jj)*56}") for s in range(2) for jj in range(2)]
    adr = I(f"""v_and_b32 {v(vXA)}, 31, v0
    v_bfe_u32 {v(vXA+1)}, v0, 5, 1
    v_mul_u32_u24 {v(vXA)}, {PHS}, {v(vXA)}
    v_lshl_add_u32 {v(vXA)}, {v(vXA+1)}, 3, {v(vXA)}
    v_add_u32 {v(vXA)}, {sO1}, {v(vXA)}
    v_add_u32 {v(vXA+1)}, {sO2}, {v(vL16)}""")
    o += ticks(0, 7, True, P1BARS, P1PLAN, {3: wpr}, {5: lds_(14) + [], 6: adr})
    o += bar('B7') + mms(6, True) + stamp(2) + cvt(KFr, ACC0, 8) + proj(KFr)
    o += I(f"s_cmp_eq_u32 {sI}, 1\ns_cbranch_scc1 L_A1")
    return o

def pathA_kv(i):
    ph, res = phi(AP, AEN, ACC0, ACC0 + 8, vT, aLr, aPADr, True)
    for q in range(4):
        ph += res[2 * q] + res[2 * q + 1]
        w = I(f"ds_write_b64 {v(vXA)}, {v(ACC0+2*q,2)} offset:{16*q}\nds_write_b64 {v(vXA)}, {v(ACC0+8+2*q,2)} offset:{56+16*q}", tag='B15')
        ph += w if q < 3 else [I("s_mov_b32 exec_hi, 0") + w + I("s_mov_b32 exec_hi, -1")]
    post = {14: cvt(KFr, ACC1, 8) + I(f"ds_write_b128 {v(vXA+1)}, {v(KFr,4)}\nds_write_b128 {v(vXA+1)}, {v(KFr+4,4)} offset:1024", tag='B15')}
    n1 = len(ph) if i == 0 else int(len(ph) * cfg.fracA)
    o = prio(1 - i) + flat(lds_(8, 9)) + flat(ph[:n1])
    o += stamp(21)
    if i == 0: o += [x for g in cfg.blockA for x in loads2(g)] + prio(0)
    o += stamp(22) + WAIT(*Ls(0, cfg.barsA[7])) + stamp(23)
    o += bar(*Ls(0, cfg.barsA[7])) + merge(ph[n1:], reads(7), lds_(*cfg.planA.get(7, []))) + stamp(18)
    o += ticks(8, 15, True, cfg.barsA, cfg.planA, {}, {}, post)
    return o

PP = [(28, 4, sFB, '0'), (32, 4, sFB, '128'), (52, 4, sFB, '256'), (76, 4, sFB, '384')]
def pathA_p2(i):
    o = (I("L_A1:") if i else []) + pathA_kv(i)
    idn = I(f"""v_and_b32 {v(vT)}, 31, v0
    v_bfe_u32 {v(vT+1)}, v0, 5, 1
    v_lshlrev_b32 {v(vT+1)}, 2, {v(vT+1)}
    v_sub_u32 {v(vT)}, {v(vT)}, {v(vT+1)}
    v_mov_b32 {v(vT+1)}, 0x3f80
    v_mov_b32 {v(vT+2)}, 0x3f800000""")
    for d in range(4):
        f0 = (2 * d & 3) + 8 * (d >> 1)
        idn.append(I(f"""v_cmp_eq_u32 vcc, {f0}, {v(vT)}
        v_cmp_eq_u32 {sTM}, {f0+1}, {v(vT)}
        v_cndmask_b32_e64 {v(AID+d)}, 0, {v(vT+1)}, vcc
        v_cndmask_b32_e64 {v(AID+d)}, {v(AID+d)}, {v(vT+2)}, {sTM}"""))
    if i == 0:
        kv = I(f"s_lshl_b32 {sT0}, {sHD}, 13\ns_add_u32 {sT0}, {sT0}, {A_VF}\nv_add_u32 {v(vXA+1)}, {sT0}, {v(vL16)}")
        rd = []
        for t in range(4):
            b = AP + 16 * (t & 1); r = []
            for s in range(2):
                for jj in range(2): r += I(f"ds_read_b64_tr_b16 {v(b+4*s+2*jj,2)}, {v(vKST)} offset:{(32*t+16*s+8*jj)*PHS}")
                r += I(f"ds_read_b128 {v(b+8+4*s,4)}, {v(vXA+1)} offset:{t*2048+s*1024}")
            rd.append(r)
        def km(t):
            b = AP + 16 * (t & 1); d = v(ACC1, 16)
            return [mfma(d, v(b+4*s,4), v(b+8+4*s,4), '0' if (t == 0 and s == 0) else d) for s in range(2)]
        o += kv + prio(2)
        kv = rd[0] + rd[1] + km(0) + rd[2] + km(1) + rd[3] + km(2) + km(3)
        kv += I(f"s_lshl_b32 s99, {sRB}, 11\ns_add_u32 s99, s99, {sSL[0]}")
        for s in range(2):
            kv += cvt(vXR + 4 * s, ACC1 + 8 * s, 4) + I(f"buffer_store_dwordx4 {v(vXR+4*s,4)}, {v(vL16)}, {sWS}, s99 offen offset:{1024*s} sc1", tag='stP')
        kv += stamp(15) + prio(0) + flat(idn)
        o += ticks(15, 22, True, {15: 20}, {}, {15: kv, cfg.flagP: bar('stP')})
    else:
        wb = wo_loads(sWOA, WOA_A, 1) + wo_loads(sWOB, WOB, 1)
        o += prio(1) + ticks(15, 22, True, {15: 20}) + prio(0) + flat(wb[:8]) + I("s_barrier")
        o += flag_set(0)
        o += flat(idn)
    QFr = vXR
    PQ = 64
    o += cvt(QFr, ACC0, 8) + I(f"v_cndmask_b32 {v(QFr+6)}, {v(QFr+6)}, 0, {sHALF}") + proj(QFr) + gate(False, vT)
    ph, res = phi(AP, AEN, PQ, PQ + 8, vT, aLr, aPADr, True)
    ph += flat(res)
    PL = 144
    pl = [I(f"s_add_u32 {sSL[0]}, {sSL[0]}, {i*1024}")]
    for k in range(16):
        g = I(f"s_xor_b32 s99, {sR}, {k*2048}\ns_add_u32 s99, s99, {sSL[0]}") if k % 2 == 0 else []
        pl.append(g + I(f"buffer_load_dwordx4 {v(PL+4*k,4)}, {v(vL16)}, {sWS}, s99 offen offset:{(k%2)*2048} sc1"))
    wa = (wo_loads8(sWOA, WOA_A, i) + wo_loads8(sWOB, WOB, i))[cfg.wbA:]
    if i == 0:
        n1 = int(len(ph) * cfg.pollP)
        o += ph[:n1] + poll_issue(PP) + ph[n1:] + stamp(6) + poll_check('P1', PP) + stamp(5) + flat(pl) + I("s_barrier") + stamp(12) + p3_setup()
    else:
        o += flat(wb[8:2 * cfg.wbA]) + stamp(5) + ph + stamp(6) + p3_setup() + I("s_barrier") + stamp(12) + flat(pl)
    KS = ACC1
    o += I(f"""s_lshl_b32 {sT0}, {sHD}, 12
    v_add_u32 {v(vT)}, {sT0}, {v(vL16)}
    s_lshl_b32 {sT0}, {sTH}, 11
    s_add_u32 {sT0}, {sT0}, {i*1024}
    v_add_u32 {v(vT+1)}, {sT0}, {v(vT)}""")
    sm = [mfma(v(KS,16), v(AID,4), v(PL+4*k,4), '0' if k == 0 else v(KS,16)) for k in range(16)]
    o += sm + flat(wa[:cfg.waA1]); wa = wa[cfg.waA1:]
    o += stamp(16)
    KV = 80
    o += cvt(KV, KS, 4) + I(f"ds_write_b128 {v(vT+1)}, {v(KV,4)}", tag='kx')
    o += WAIT('kx') + I("s_barrier")
    o += [Ins(f"ds_read_b128 {v(KV+4*q,4)}, {v(vT)} offset:{q*1024}") for q in range(4)]
    o += stamp(7)
    d = v(AP, 16)
    o += [mfma(d, v(KV+4*q,4), v(PQ+4*q,4), '0' if q == 0 else d) for q in range(4)]
    o += finish_o(AP, AEN, vT, True)
    o += stamp(8)
    o += poll_issue(OPX + OPY) + flat(wa) + WAIT('o', 'poll') + flag_set(1) + prio(0) + WAIT('wo') + I("s_barrier") + stamp(19)
    o += I("s_branch L_phase3")
    return o
Cfg.waA = 8

P3A = 38
sOB, sFO3 = 's73', 's74'
def p3_setup():
    t = vT + 4
    return I(f"""
    v_bfe_u32 {v(t)}, v0, 2, 2
    v_bfe_u32 {v(t+1)}, v0, 4, 1
    v_xor_b32 {v(t+1)}, {sHD}, {v(t+1)}
    v_and_b32 {v(t+2)}, 3, v0
    v_lshl_add_u32 {v(t+1)}, {v(t+1)}, 2, {v(t+2)}
    v_lshrrev_b32 {v(t+2)}, 1, {v(t)}
    v_xor_b32 {v(t+2)}, {sTH}, {v(t+2)}
    v_lshlrev_b32 {v(t+2)}, 6, {v(t+2)}
    v_lshl_add_u32 {v(t+2)}, {v(t+1)}, 3, {v(t+2)}
    v_lshl_add_u32 {v(t+2)}, {v(t)}, 7, {v(t+2)}
    s_and_b32 {sT3}, {sWV}, 3
    s_mul_i32 {sT0}, {sT3}, {4*28*128}
    v_bfe_u32 {v(t+3)}, v0, 5, 1
    v_add_u32 {v(P3A+2)}, {sT0}, {v(t+2)}
    v_lshl_add_u32 {v(P3A)}, {v(t+3)}, 9, {v(P3A+2)}
    v_xor_b32 {v(P3A+1)}, 64, {v(P3A)}
    v_xor_b32 {v(P3A+3)}, 64, {v(P3A+2)}
    s_bfe_u32 {sT0}, {sCG}, {'0x10001' if cfg.rot3 else '0x10008'}
    s_xor_b32 {sT0}, {sT0}, {sI}
    s_lshl1_add_u32 {sT0}, {sTB}, {sT0}
    s_mul_i32 {sT1}, {sT0}, {32*896}
    s_lshl2_add_u32 {sT2}, {sCG}, {sT3}
    s_lshl_b32 {sT2}, {sT2}, 5
    s_add_u32 {sT1}, {sT1}, {sT2}
    v_and_b32 {v(t)}, 31, v0
    v_mul_u32_u24 {v(t)}, 896, {v(t)}
    v_lshl_add_u32 {v(t)}, {v(t+3)}, 4, {v(t)}
    v_add_u32 {v(P3A+4)}, {sT1}, {v(t)}
    v_add_u32 {v(P3A+5)}, {sM2}, {v(vL16)}
    s_lshl2_add_u32 {sT0}, {sT0}, {sT3}
    s_lshl_b32 {sOB}, {sT0}, 13
    s_add_u32 {sOB}, {sOB}, {H(WS_O)}
    s_lshl_b32 {sT0}, {sT0}, 7
    s_add_u32 {sT0}, {sT0}, {WS_FO}
    s_add_u32 s56, s36, {sT0}
    s_addc_u32 s57, s37, 0
    s_and_b32 s75, {sCG}, 1
    s_lshl_b32 s76, s75, 15
    s_xor_b32 s78, s76, 32768
    """)

OF, AC = 128, 64
WRING = [96, 112, 192]
ADR = [56, 60]
def oloads(part):
    r = []; sreg_ = sO2 if part else sO1
    for k in range(2):
        g = I(f"s_add_u32 s99, {sreg_}, {k*4096}")
        for q in range(4):
            r.append(g + I(f"buffer_load_dwordx4 {v(OF+32*part+16*k+4*q,4)}, {v(vL16)}, {sWS}, s99 offen offset:{q*1024} sc1")); g = []
    return r
def worb(n):
    r = []; b = WRING[n % 3]
    for s in range(2):
        for ct in range(2):
            for jj in range(2):
                ar = ADR[n // 4] + ct + (2 if (s == 1 and jj == 1) else 0)
                r += I(f"ds_read_b64_tr_b16 {v(b+8*s+4*ct+2*jj,2)}, {v(ar)} offset:{(n%4)*3584+s*2048+jj*1024}")
    return r
def womm(n):
    r = []; b = WRING[n % 3]
    for s in range(2):
        for ct in range(2):
            d = v(AC + 16 * ct, 16)
            r.append(mfma(d, v(b+8*s+4*ct,4), v(OF+8*n+4*s,4), '0' if (n == 0 and s == 0) else d))
    return r
def heads(a_, b_):
    o = []
    for n in range(a_, b_): o += merge(womm(n), worb(n + 2) if n + 2 < 8 else [])
    return o

OPX = [(28, 4, 's[56:57]', 's76')]
OPY = [(32, 4, 's[56:57]', 's78')]
def phase3_head():
    o = I(f"""L_phase3:
    s_cmp_eq_u32 {sACT}, 0
    s_cbranch_scc1 L_tailb""") + stamp(9) + I(f"""
    s_mov_b32 {sSPIN}, 0
    s_branch L_p3_chk
    L_p3_poll:
    {spoll_loads(OPX + OPY)}
    s_add_u32 {sSPIN}, {sSPIN}, 1
    s_waitcnt lgkmcnt(0)
    L_p3_chk:
    {spoll_cmp(OPY)}s_cselect_b32 s80, 1, 0
    {spoll_cmp(OPX)}s_cbranch_scc0 L_p3_go
    s_cmp_gt_u32 {sSPIN}, {SPIN}
    s_cselect_b32 s80, 0, s80
    s_cmp_eq_u32 s80, 1
    s_cbranch_scc1 L_p3_poll
    s_xor_b32 s75, s75, 1
    s_mov_b32 s78, s76
    s_mov_b32 s80, 1
    L_p3_go:
    s_lshl_b32 {sT0}, s75, 21
    s_xor_b32 {sT1}, {sT0}, {H(1 << 21)}
    s_add_u32 {sO1}, {sOB}, {sT0}
    s_add_u32 {sO2}, {sOB}, {sT1}
    """)
    o += stamp(20)
    o += flat(oloads(0))
    o += I(f"s_cmp_eq_u32 s75, 0\ns_cselect_b32 {sT0}, {sWOAB}, {WOB}\ns_cselect_b32 {sT1}, {WOB}, {sWOAB}")
    for k in range(4): o += I(f"v_add_u32 {v(ADR[0]+k)}, {sT0}, {v(P3A+k)}\nv_add_u32 {v(ADR[1]+k)}, {sT1}, {v(P3A+k)}")
    o += I(f"""s_cmp_eq_u32 s80, 0
    s_cbranch_scc1 L_p3_early""") + I(f"""{spoll_loads(OPY)}
    s_waitcnt lgkmcnt(0)
    {spoll_cmp(OPY)}s_cbranch_scc1 L_p3_late""", cond=True) + I("L_p3_early:")
    return o
def xbar(n): return I("s_waitcnt lgkmcnt(0)") + worb(0) + worb(1)
def phase3_early(): return flat(oloads(1)) + xbar(16) + heads(0, 4) + I("L_p3_join:")
def phase3_late(): return I("L_p3_late:") + xbar(8) + heads(0, 4) + spin('p3b', OPY) + flat(oloads(1)) + I("s_branch L_p3_join")
def phase3_tail():
    o = stamp(10)
    for d in range(1, 4): o += I(f"v_xor_b32 {v(44+d)}, {d*2048}, {v(P3A+5)}\nv_add_u32 {v(44+d)}, {sSCR}, {v(44+d)}")
    o += I(f"v_add_u32 {v(44)}, {sSCR}, {v(P3A+5)}")
    o += heads(4, 6)
    m = womm(6) + womm(7)
    wr = [Ins(f"ds_write_b128 {v(44+d)}, {v(AC+8*d+4*q,4)} offset:{(d-1)*16384+q*1024}", tag='cx') for d in (2, 3, 1) for q in range(2)]
    o += m[1::2] + m[0::2] + wr
    o += WAIT('cx') + I("s_barrier")
    o += [Ins(f"ds_read_b128 {v(208+8*d+4*q,4)}, v44 offset:{d*16384+q*1024}") for d in range(3) for q in range(2)]
    for d in range(3):
        for i in range(4): o += I(f"v_pk_add_f32 {v(AC+2*i,2)}, {v(AC+2*i,2)}, {v(208+8*d+2*i,2)}")
    o += cvt(48, AC, 4)
    o += I(f"""v_permlane32_swap_b32 v48, v50
    v_permlane32_swap_b32 v49, v51
    buffer_store_dwordx4 v[48:51], {v(P3A+4)}, {sOUT}, 0 offen""")
    o += stamp(11)
    return o

def tail():
    t = f"""L_tailb:
    s_cmp_lg_u32 s2, 16
    s_cbranch_scc1 L_tail
    s_cmp_lg_u32 {sWV}, 0
    s_cbranch_scc1 L_tail
    v_and_b32 v12, 15, v0
    v_bfe_u32 v13, v0, 4, 2
    v_lshrrev_b32 v14, 2, v12
    v_lshlrev_b32 v14, 7, v14
    v_and_b32 v15, 3, v12
    v_lshl_add_u32 v14, v15, 2, v14
    v_lshl_add_u32 v14, v13, 11, v14
    v_add_u32 v14, {WS_FP}, v14
    v_add_u32 v15, 0x2000, v14
    v_lshlrev_b32 v16, 10, v12
    v_lshl_add_u32 v16, v13, 7, v16
    v_add_u32 v16, {WS_FK}, v16
    s_mov_b32 {sSPIN}, 0
L_tail_l:
    buffer_load_dword v24, v14, {sWS}, 0 offen sc1
    buffer_load_dword v25, v15, {sWS}, 0 offen sc1
    buffer_load_dword v26, v16, {sWS}, 0 offen sc1
    buffer_load_dword v27, v16, {sWS}, 0 offen offset:512 sc1
    s_add_u32 {sSPIN}, {sSPIN}, 1
    s_waitcnt vmcnt(0)
    v_xor_b32 v24, {sNONCE}, v24
    v_xor_b32 v25, {sNONCE}, v25
    v_xor_b32 v26, {sNONCE}, v26
    v_xor_b32 v27, {sNONCE}, v27
    v_or3_b32 v24, v24, v25, v26
    v_or_b32 v24, v24, v27
    v_cmp_ne_u32 vcc, 0, v24
    s_cmp_gt_u32 {sSPIN}, {SPIN}
    s_cbranch_scc1 L_tail_go
    s_cbranch_vccnz L_tail_l
L_tail_go:
    v_mov_b32 v20, {WS_E}
    v_mov_b32 {v(vNON)}, {sNONCE}
    s_mov_b64 exec, 1
    buffer_store_dword {v(vNON)}, v20, {sWS}, 0 offen sc1
    s_mov_b64 exec, -1
L_tail:
"""
    if cfg.stamps:
        t += f"""    s_memrealtime s[98:99]
    s_waitcnt lgkmcnt(0)
    v_writelane_b32 {v(vST)}, s98, 31
    s_lshl3_add_u32 {sT0}, s2, {sWV}
    s_lshl_b32 {sT0}, {sT0}, 8
    s_add_u32 {sT0}, {sT0}, {H(WS_STAMP)}
    v_lshrrev_b32 v20, 2, {v(vL16)}
    v_add_u32 v20, {sT0}, v20
    buffer_store_dword {v(vST)}, v20, {sWS}, 0 offen
"""
    t += "L_end:\n    s_endpgm\n"
    return t

def build(code_len):
    spin_blocks.clear()
    stats = {}
    st = State()
    pro = finalize(prologue(code_len), st, stats)
    sa = st.fork(); sb = st.fork()
    A = finalize(pathA_p1(), sa, stats)
    sa1 = sa.fork()
    A0 = finalize(pathA_p2(0), sa, stats); A1 = finalize(pathA_p2(1), sa1, stats)
    B = finalize(pathB_p1(), sb, stats)
    sb1 = sb.fork()
    B0 = finalize(pathB_p2(0), sb, stats); B1_ = finalize(pathB_p2(1), sb1, stats)
    for s in (sa, sb, sa1, sb1):
        assert all(o.kind == 'dma' for o in s.vm) and all(o.op == 's_atomic_add' for o in s.lg), (s.vm, s.lg)
    s3 = State(); s3.hist = list(sb.hist)
    P3h = finalize(phase3_head(), s3, stats)
    s3l = s3.fork()
    P3e = finalize(phase3_early(), s3, stats); P3l = finalize(phase3_late(), s3l, stats)
    assert [o.text for o in s3.vm] == [o.text for o in s3l.vm] and not s3l.lg
    P3t = finalize(phase3_tail(), s3, stats)
    body = text(pro) + text(A) + text(A0) + text(A1) + text(B) + text(B0) + text(P3h) + text(P3e) + text(P3t) + "    s_branch L_tail\n" + text(P3l) + text(B1_) + ''.join(spin_blocks) + tail()
    hdr = open('cdna_kernels/%s.s.ref' % NAME).read().split('; Override launch')[0]
    src = hdr + f"""; Generated by a hand-written generator script (no compiler output).
; @launch grid=(256,1,1) block=(512,1,1) lds={LDS_BYTES}
.amdgcn_target "amdgcn-amd-amdhsa--gfx950"
.text
.globl {NAME}_kernel
.p2align 8
.type {NAME}_kernel,@function
{NAME}_kernel:
{body}L_code_end:
.section .rodata,"a"
.p2align 6
.amdhsa_kernel {NAME}_kernel
  .amdhsa_next_free_vgpr 256
  .amdhsa_next_free_sgpr 102
  .amdhsa_accum_offset 256
  .amdhsa_group_segment_fixed_size 0
  .amdhsa_kernarg_size 88
  .amdhsa_user_sgpr_count 2
  .amdhsa_user_sgpr_kernarg_segment_ptr 1
  .amdhsa_system_sgpr_workgroup_id_x 1
.end_amdhsa_kernel
"""
    info = dict(stats, pro=cost(pro), A=cost(A), A0=cost(A0), A1=cost(A1), B=cost(B), B0=cost(B0), B1=cost(B1_), P3=cost(P3h) + cost(P3e) + cost(P3t))
    return src, info

def code_size(src):
    import subprocess, tempfile
    d = tempfile.mkdtemp()
    open(d + '/k.s', 'w').write(src)
    r = subprocess.run(['clang', '-x', 'assembler', '-target', 'amdgcn-amd-amdhsa', '-mcpu=gfx950', '-c', d + '/k.s', '-o', d + '/k.o'], capture_output=True, text=True)
    if r.returncode: raise RuntimeError(r.stderr[:3000])
    r = subprocess.run(['llvm-objdump', '-h', d + '/k.o'], capture_output=True, text=True)
    for l in r.stdout.split('\n'):
        p = l.split()
        if len(p) > 2 and p[1] == '.text': return int(p[2], 16)

def generate(**kw):
    for k, val in kw.items(): setattr(cfg, k, val)
    src, _ = build(0x4000)
    n = code_size(src)
    src, info = build(n)
    assert code_size(src) == n and n <= 65536, n
    info['bytes'] = n
    return src, info

if __name__ == '__main__':
    out = sys.argv[1] if len(sys.argv) > 1 else 'cdna_kernels/%s.s' % NAME
    kw = {}
    for x in sys.argv[2:]:
        k, val = x.split("=", 1); kw[k] = eval(val)
    src, info = generate(**kw)
    open(out, 'w').write(src)
    print(out, info)
```
